```python
import torch

def _softmax(x, axis=-1):
    return torch.softmax(x, dim=axis)
def _gelu(x):
    return torch.nn.functional.gelu(x, approximate="tanh")
def _silu(x):
    return torch.nn.functional.silu(x)
def _sigmoid(x):
    return torch.sigmoid(x)
def _layernorm(x, axis=-1, eps=1e-5):
    m = x.mean(dim=axis, keepdim=True)
    v = x.var(dim=axis, keepdim=True, unbiased=False)
    return (x - m) / torch.sqrt(v + eps)
def _scatter_add(tgt, idx, src, axis=0):
    return tgt.clone().index_add_(axis, idx, src)
def _segment_sum(src, seg, n):
    out = torch.zeros((n,) + src.shape[1:], dtype=src.dtype)
    return out.index_add_(0, seg, src)
def _pad(x, pw):
    flat = tuple(v for pair in reversed(pw) for v in pair)
    return torch.nn.functional.pad(x, flat)

kernel_name = 'sequential_preLN__softmax_full_mha__swiglu_ffn__prompt'

def setup_inputs():

    _w = (lambda a: (lambda t: t.to(torch.bfloat16) if t.is_floating_point() else t)(torch.as_tensor(a)))
    def _A_setup():
        B, S, D = 1, 2048, 512
        return {
            "x": _w((lambda *s: torch.randn(*s, dtype=torch.bfloat16) * 0.05)(B, S, D)),
            "wqkv": _w((lambda *s: torch.randn(*s, dtype=torch.bfloat16) * 0.05)(D, 3 * D)),
            "wo": _w((lambda *s: torch.randn(*s, dtype=torch.bfloat16) * 0.05)(D, D)),
        }
    _A_in = _A_setup()

    def _B_setup():
        B, S, D, F = 1, 2048, 512, 1792
        return {
            "x": _w((lambda *s: torch.randn(*s, dtype=torch.bfloat16) * 0.05)(B, S, D)),
            "w_gate": _w((lambda *s: torch.randn(*s, dtype=torch.bfloat16) * 0.05)(D, F)),
            "w_up": _w((lambda *s: torch.randn(*s, dtype=torch.bfloat16) * 0.05)(D, F)),
            "w_down": _w((lambda *s: torch.randn(*s, dtype=torch.bfloat16) * 0.05)(F, D)),
        }
    _B_in = _B_setup()

    return {
        "A_x": _A_in["x"],
        "A_wqkv": _A_in["wqkv"],
        "A_wo": _A_in["wo"],
        "B_x": _B_in["x"],
        "B_w_gate": _B_in["w_gate"],
        "B_w_up": _B_in["w_up"],
        "B_w_down": _B_in["w_down"],
    }

def reference(A_x, A_wqkv, A_wo, B_x, B_w_gate, B_w_up, B_w_down):
    def _A_ref(x, wqkv, wo):
        B, S, D = x.shape
        H = 32; Dh = D // H
        qkv = (lambda x, *d: x.permute(*d))((x @ wqkv).reshape(B, S, 3, H, Dh), 2, 0, 3, 1, 4)
        q, k, v = qkv[0], qkv[1], qkv[2]
        scale = Dh ** -0.5
        scores = torch.einsum("bhqd,bhkd->bhqk", q, k) * scale
        p = _softmax(scores, axis=-1)
        o = torch.einsum("bhqk,bhkd->bhqd", p, v)
        return (lambda x, *d: x.permute(*d))(o, 0, 2, 1, 3).reshape(B, S, D) @ wo

    def _B_ref(x, w_gate, w_up, w_down):
        g = _silu(x @ w_gate)
        u = x @ w_up
        return (g * u) @ w_down

    x = A_x
    h = x + _A_ref(_layernorm(x, axis=-1), A_wqkv, A_wo)
    h2 = h + _B_ref(_layernorm(h, axis=-1), B_w_gate, B_w_up, B_w_down)
    return h2
```

```python
import re

TRANS = ("v_exp_f32", "v_log_f32", "v_rcp_f32", "v_rsq_f32", "v_sqrt_f32", "v_sin_f32", "v_cos_f32")

def _regs(tok):
    tok = tok.strip()
    neg = tok.lstrip("-")
    if neg.startswith("abs(") or neg.startswith("|"):
        neg = neg.replace("abs(", "").replace(")", "").replace("|", "")
    m = re.fullmatch(r"([vas])(\d+)", neg)
    if m:
        return [(m.group(1), int(m.group(2)))]
    m = re.fullmatch(r"([vas])\[(\d+):(\d+)\]", neg)
    if m:
        return [(m.group(1), i) for i in range(int(m.group(2)), int(m.group(3)) + 1)]
    if neg == "vcc":
        return [("s", 106), ("s", 107)]
    if neg == "exec":
        return [("s", 126), ("s", 127)]
    if neg == "m0":
        return [("s", 124)]
    return []

def _split_ops(s):
    out, depth, cur = [], 0, ""
    for ch in s:
        if ch == "[":
            depth += 1
        if ch == "]":
            depth -= 1
        if ch == "," and depth == 0:
            out.append(cur.strip()); cur = ""
        else:
            cur += ch
    if cur.strip():
        out.append(cur.strip())
    return out

class Ins:
    __slots__ = ("text", "mn", "ops", "w", "r", "kind", "passes", "srcc", "ab", "states", "dpp", "lds_dma")
    def __init__(self, text):
        self.text = text
        t = text.split(";")[0].strip()
        parts = t.split(None, 1)
        self.mn = parts[0]
        rest = parts[1] if len(parts) > 1 else ""
        ops = _split_ops(rest)
        if ops:
            last = ops[-1].split()
            mods = last[1:]
            ops[-1] = last[0] if last else ""
        else:
            mods = []
        self.ops = ops
        mn = self.mn
        self.w, self.r = [], []
        self.passes = 0
        self.srcc = []
        self.ab = []
        self.states = 1
        self.dpp = any(m.startswith("row_") or m.startswith("quad_perm") or m.startswith("wave_") for m in mods) or "_dpp" in mn
        self.lds_dma = False
        if mn == "s_nop":
            self.kind = "nop"; self.states = int(ops[0], 0) + 1
        elif mn.startswith("v_mfma"):
            self.kind = "mfma"
            self.passes = 8 if "32x32x16" in mn else 4 if "16x16x32" in mn else 16
            self.w = _regs(ops[0]); self.ab = _regs(ops[1]) + _regs(ops[2]); self.srcc = _regs(ops[3])
            self.r = self.ab + self.srcc
        elif mn.startswith("v_cmp"):
            self.kind = "valu"; self.w = _regs(ops[0]); self.r = sum((_regs(o) for o in ops[1:]), [])
        elif mn.startswith("v_readfirstlane") or mn.startswith("v_readlane"):
            self.kind = "valu"; self.w = _regs(ops[0]); self.r = sum((_regs(o) for o in ops[1:]), [])
        elif mn.startswith("v_permlane"):
            self.kind = "valu"; self.w = _regs(ops[0]) + _regs(ops[1]); self.r = list(self.w)
        elif mn.startswith("v_"):
            self.kind = "valu"
            self.w = _regs(ops[0]); self.r = sum((_regs(o) for o in ops[1:]), [])
            if mn.startswith("v_fmac") or mn.startswith("v_dot2c") or self.dpp:
                self.r += self.w
            if mn.startswith("v_add_co") or mn.startswith("v_addc_co"):
                self.w += _regs(ops[1])
        elif mn.startswith("ds_"):
            self.kind = "ds"
            if mn.startswith("ds_read") or mn.startswith("ds_bpermute") or mn.startswith("ds_swizzle") or mn.startswith("ds_permute"):
                self.w = _regs(ops[0]); self.r = sum((_regs(o) for o in ops[1:]), [])
            else:
                self.r = sum((_regs(o) for o in ops), [])
        elif mn.startswith("buffer_") or mn.startswith("global_"):
            self.kind = "vmem"
            if "lds" in mods:
                self.lds_dma = True
                self.r = sum((_regs(o) for o in ops), []) + [("s", 124)]
            elif "_load" in mn:
                self.w = _regs(ops[0]); self.r = sum((_regs(o) for o in ops[1:]), [])
            else:
                self.r = sum((_regs(o) for o in ops), [])
        elif mn.startswith("s_"):
            self.kind = "salu"
            if mn.startswith("s_cmp") or mn.startswith("s_cbranch") or mn in ("s_branch", "s_barrier", "s_waitcnt", "s_endpgm", "s_setprio", "s_sleep"):
                self.r = sum((_regs(o) for o in ops), [])
            else:
                self.w = _regs(ops[0]) if ops else []
                self.r = sum((_regs(o) for o in ops[1:]), [])
        else:
            raise ValueError("unknown instr: " + text)

def need_states(p, c):
    n = 0
    pw = set(p.w); cr = set(c.r); cw = set(c.w)
    if p.kind == "valu":
        vw = {x for x in pw if x[0] in "va"}
        sw = {x for x in pw if x[0] == "s"}
        if c.kind == "mfma" and vw & cr:
            n = max(n, 2)
        if c.kind == "valu":
            if p.mn in TRANS and c.mn not in TRANS and vw & cr:
                n = max(n, 1)
            if (c.mn.startswith("v_readfirstlane") or c.mn.startswith("v_readlane")) and vw & cr:
                n = max(n, 1)
            if c.mn.startswith("v_permlane") and vw & cr:
                n = max(n, 2)
            if c.dpp and vw & cr:
                n = max(n, 2)
            if sw & cr:
                n = max(n, 2)
                if c.mn.startswith("v_readlane") or c.mn.startswith("v_writelane"):
                    n = max(n, 4)
            if p.mn.startswith("v_dot2") and (vw & (cr | cw)):
                if not (c.mn == p.mn and not (vw & set(sum((_regs(o) for o in c.ops[1:]), [])))):
                    n = max(n, 3)
        if c.kind == "vmem" and sw & cr:
            n = max(n, 5)
        if c.kind == "salu" and sw & cr:
            n = max(n, 2)
        if p.mn.startswith("v_dot2") and c.kind in ("ds", "vmem", "mfma") and vw & cr:
            n = max(n, 3)
    if p.kind == "mfma":
        big = {2: 5, 4: 8, 8: 12, 16: 20}[p.passes]
        ovl = {2: 4, 4: 6, 8: 10, 16: 18}[p.passes]
        if c.kind == "mfma":
            if pw & set(c.ab):
                n = max(n, big)
            if pw & set(c.srcc):
                if not (p.w == c.srcc and p.passes == c.passes):
                    n = max(n, ovl)
                elif p.passes == 2:
                    n = max(n, 2)
            elif pw & cw:
                n = max(n, ovl)
        elif c.kind in ("valu", "ds", "vmem"):
            if pw & (cr | cw):
                n = max(n, big)
        if c.kind == "valu" and set(p.srcc) & cw:
            n = max(n, {2: 1, 4: 3, 8: 7, 16: 15}[p.passes])
    if p.kind == "salu" and ("s", 124) in pw and c.lds_dma:
        n = max(n, 1)
    if p.kind == "vmem" and ("x3" in p.mn or "x4" in p.mn) and "store" in p.mn:
        data = set(_regs(p.ops[0])) if p.mn.startswith("buffer_") else set(_regs(p.ops[1]))
        if data & cw:
            n = max(n, 2)
    return n

class Asm:
    def __init__(self):
        self.items = []
        self.vm = []
        self.lg = []
    def __call__(self, text, tag=None):
        for line in text.strip().split("\n"):
            line = line.strip()
            if not line or line.startswith(";"):
                continue
            ins = Ins(line)
            self.items.append(ins)
            if ins.kind == "vmem":
                self.vm.append(tag)
            if ins.kind == "ds":
                self.lg.append(tag)
    def label(self, l):
        self.items.append(l + ":")
    def raw(self, s):
        self.items.append(s)
    def vm_n(self, tags):
        if not isinstance(tags, (list, set)):
            tags = [tags]
        last = -1
        for i, t in enumerate(self.vm):
            if t in tags:
                last = i
        return len(self.vm) - 1 - last
    def wait_vm(self, tags):
        n = self.vm_n(tags)
        if n >= len(self.vm):
            return
        assert n <= 63, n
        self("s_waitcnt vmcnt(%d)" % n)
        self.vm = self.vm[len(self.vm) - n:] if n else []
    def wait_lg(self, tags):
        if not isinstance(tags, (list, set)):
            tags = [tags]
        last = -1
        for i, t in enumerate(self.lg):
            if t in tags:
                last = i
        n = len(self.lg) - 1 - last
        if n >= len(self.lg):
            return
        n = min(n, 15)
        self("s_waitcnt lgkmcnt(%d)" % n)
        self.lg = self.lg[len(self.lg) - n:] if n else []
    def wait_lg0(self):
        self("s_waitcnt lgkmcnt(0)"); self.lg = []
    def wait_vm0(self):
        self("s_waitcnt vmcnt(0)"); self.vm = []
    def emit(self):
        out = []
        hist = []
        for it in self.items:
            if isinstance(it, str):
                out.append(it)
                continue
            pad = 0
            dist = 0
            for p in reversed(hist):
                need = need_states(p, it)
                if need > dist:
                    pad = max(pad, need - dist)
                dist += p.states
                if dist > 24:
                    break
            while pad > 0:
                k = min(pad, 16)
                nop = Ins("s_nop %d" % (k - 1))
                hist.append(nop)
                out.append("    s_nop %d" % (k - 1))
                pad -= k
            hist.append(it)
            if len(hist) > 64:
                hist = hist[-40:]
            out.append("    " + it.text)
        return "\n".join(out) + "\n"

def kernel_text(name, asm, nvgpr, nsgpr, accum=None, nagpr=0):
    if accum is None:
        accum = (nvgpr + 3) // 4 * 4
    total = accum + nagpr if nagpr else nvgpr
    body = ".globl %s\n.p2align 8\n.type %s,@function\n%s:\n" % (name, name, name) + asm.emit()
    desc = """.p2align 6
.amdhsa_kernel %s
  .amdhsa_next_free_vgpr %d
  .amdhsa_next_free_sgpr %d
  .amdhsa_accum_offset %d
  .amdhsa_group_segment_fixed_size 0
  .amdhsa_kernarg_size 80
  .amdhsa_user_sgpr_count 2
  .amdhsa_user_sgpr_kernarg_segment_ptr 1
  .amdhsa_system_sgpr_workgroup_id_x 1
.end_amdhsa_kernel
""" % (name, total, nsgpr, accum)
    return body, desc
```

```python
from asmlib import *
MB = 1 << 20
QF = 0
KF = 2 * MB
VF = 4 * MB
OF = 6 * MB
HF = 8 * MB
AF = 10 * MB
WOF = 18 * MB
WGUF = 19 * MB
WDF = 23 * MB
KN = 25 * MB
ST = 25 * MB + 65536
CS = 26 * MB
WS_BYTES = 256 * MB
LOG2E = 1.4426950408889634
import struct
def f32hex(x):
    return "0x%08x" % struct.unpack("<I", struct.pack("<f", x))[0]
def vr(b, n):
    return "v[%d:%d]" % (b, b + n - 1)
def ar(b, n):
    return "a[%d:%d]" % (b, b + n - 1)
def srd(a, d, lo, nbytes):
    if d != lo:
        a("s_mov_b32 s%d, s%d" % (d, lo))
        a("s_mov_b32 s%d, s%d" % (d + 1, lo + 1))
    a("s_mov_b32 s%d, 0x%x" % (d + 2, nbytes))
    a("s_mov_b32 s%d, 0x00020000" % (d + 3))
```

```python
from common import *

def k1():
    a = Asm()
    XB = 98304
    a("s_cmp_ge_u32 s2, 256")
    a("s_cbranch_scc1 L_k1_end")
    a("s_load_dwordx2 s[8:9], s[0:1], 0")
    a("s_load_dwordx2 s[12:13], s[0:1], 8")
    a("s_load_dwordx2 s[16:17], s[0:1], 72")
    a("v_and_b32 v1, 63, v0")
    a("v_lshrrev_b32 v24, 6, v0")
    a("s_and_b32 s21, s2, 6")
    a("s_lshl_b32 s21, s21, 1")
    a("s_lshr_b32 s22, s2, 3")
    a("s_and_b32 s22, s22, 3")
    a("v_readfirstlane_b32 s20, v24")
    a("s_add_u32 s21, s21, s22")
    a("s_and_b32 s22, s2, 1")
    a("s_lshl_b32 s22, s22, 3")
    a("s_lshr_b32 s23, s2, 5")
    a("s_add_u32 s22, s22, s23")
    a("s_lshl_b32 s23, s21, 2")
    a("s_add_u32 s23, s23, s20")
    a("s_lshl_b32 s24, s23, 15")
    a("v_lshrrev_b32 v24, 3, v1")
    a("v_lshlrev_b32 v24, 10, v24")
    a("v_add_u32 v24, s24, v24")
    a("v_and_b32 v25, 7, v1")
    a("v_lshrrev_b32 v26, 4, v1")
    a("v_xor_b32 v25, v25, v26")
    a("v_lshl_add_u32 v2, v25, 4, v24")
    a("v_xor_b32 v25, 4, v25")
    a("v_lshl_add_u32 v3, v25, 4, v24")
    a("v_add_u32 v3, 8192, v3")
    a("v_add_u32 v4, 16384, v2")
    a("v_add_u32 v5, 16384, v3")
    a("s_lshl_b32 s25, s20, 4")
    a("v_lshrrev_b32 v24, 2, v1")
    a("v_add_u32 v24, s25, v24")
    a("v_mul_u32_u24 v24, 3072, v24")
    a("v_and_b32 v25, 3, v1")
    a("v_lshl_add_u32 v24, v25, 4, v24")
    a("s_lshl_b32 s25, s22, 6")
    a("v_add_u32 v6, s25, v24")
    a("s_lshl_b32 s26, s20, 14")
    a("s_add_u32 s26, s26, %d" % XB)
    a("s_lshl_b32 s27, s20, 10")
    a("s_mov_b32 s10, 0x200000")
    a("s_mov_b32 s11, 0x00020000")
    a("s_mov_b32 s14, %d" % (512 * 3072))
    a("s_mov_b32 s15, 0x00020000")
    a("s_mov_b32 s18, 0x%x" % WS_BYTES)
    a("s_mov_b32 s19, 0x00020000")
    a("s_waitcnt lgkmcnt(0)")

    def dma_x(cc):
        slot = cc % 4
        for i in range(4):
            a("s_add_u32 m0, s26, %d" % (slot * 4096 + i * 1024 - cc * 128))
            a("buffer_load_dwordx4 v%d, s[8:11], 0 offen offset:%d lds" % (2 + i, cc * 128), tag=("x", cc))
    def dma_w(cc):
        a("s_mov_b32 s28, %d" % (cc * 64 * 3072))
        for b in range(3):
            a("s_add_u32 m0, s27, %d" % (b * 32768 + cc * 4096 - b * 1024))
            a("buffer_load_dwordx4 v6, s[12:15], s28 offen offset:%d lds" % (b * 1024), tag=("w", cc))
    for cc in range(4):
        dma_x(cc); dma_w(cc)
    for cc in range(4, 8):
        dma_w(cc)

    a("v_and_b32 v24, 31, v1")
    a("v_lshrrev_b32 v25, 5, v1")
    a("v_lshrrev_b32 v26, 1, v24")
    a("v_and_b32 v26, 7, v26")
    a("v_lshlrev_b32 v27, 7, v24")
    a("v_add_u32 v27, s26, v27")
    a("v_and_b32 v28, 15, v1")
    a("v_lshrrev_b32 v28, 2, v28")
    a("v_lshl_add_u32 v28, v25, 3, v28")
    a("v_lshlrev_b32 v28, 6, v28")
    a("v_and_b32 v29, 3, v1")
    a("v_lshl_add_u32 v28, v29, 3, v28")
    a("v_bfe_u32 v29, v1, 4, 1")
    a("v_lshl_add_u32 v28, v29, 5, v28")
    for j in range(4):
        a("s_add_u32 s29, s20, %d" % j)
        a("s_and_b32 s29, s29, 3")
        a("s_lshl_b32 s30, s29, 1")
        a("v_add_u32 v29, s30, v25")
        a("v_xor_b32 v29, v29, v26")
        a("v_lshl_add_u32 v%d, v29, 4, v27" % (8 + j))
        a("s_lshl_b32 s30, s29, 10")
        a("v_add_u32 v%d, s30, v28" % (12 + j))
        a("v_add_u32 v%d, 0x10000, v%d" % (16 + j, 12 + j))
    a("v_lshrrev_b32 v24, 4, v1")
    a("v_lshrrev_b32 v26, 2, v1")
    a("v_xor_b32 v24, v24, v26")
    a("v_and_b32 v24, 1, v24")
    a("v_cmp_eq_u32 vcc, 0, v24")
    a("v_mov_b32 v26, 0x3f803f80")
    a("v_cndmask_b32 v20, 0, v26, vcc")
    a("v_mov_b32 v21, v20")
    a("v_mov_b32 v22, v20")
    a("v_mov_b32 v23, v20")
    a("v_mov_b32 v28, 0")
    a("v_mov_b32 v29, 0")

    XF = [32, 36]
    WF = [[40, 44, 48], [52, 56, 60]]
    ACC = [64, 80, 96]
    SX, CSR = 112, [116, 120, 124]
    UT = 128
    def reads(n):
        cc, j = n // 4, n % 4
        bf = n % 2
        a("ds_read_b128 %s, v%d offset:%d" % (vr(XF[bf], 4), 8 + j, (cc % 4) * 4096), tag=("r", n))
        for b in range(3):
            for t in range(2):
                if b < 2:
                    a("ds_read_b64_tr_b16 %s, v%d offset:%d" % (vr(WF[bf][b] + 2 * t, 2), 12 + j, b * 32768 + cc * 4096 + t * 256), tag=("r", n))
                else:
                    a("ds_read_b64_tr_b16 %s, v%d offset:%d" % (vr(WF[bf][b] + 2 * t, 2), 16 + j, cc * 4096 + t * 256), tag=("r", n))
    a.wait_vm([("x", 0), ("w", 0)])
    a("s_barrier")
    reads(0)
    for n in range(32):
        cc, j = n // 4, n % 4
        bf = n % 2
        if n + 1 < 32:
            if (n + 1) % 4 == 0:
                a.wait_vm([("x", cc + 1), ("w", cc + 1)])
                a("s_barrier")
            reads(n + 1)
        a.wait_lg(("r", n))
        if j == 3 and cc + 4 < 8:
            dma_x(cc + 4)
        z = n == 0
        x = vr(XF[bf], 4)
        def c_of(base, cnt, first):
            return "0" if first else vr(base, cnt)
        mf = []
        mf.append("v_mfma_f32_32x32x16_bf16 %s, %s, %s, %s" % (vr(ACC[0], 16), vr(WF[bf][0], 4), x, c_of(ACC[0], 16, z)))
        mf.append("v_mfma_f32_32x32x16_bf16 %s, %s, %s, %s" % (vr(ACC[1], 16), vr(WF[bf][1], 4), x, c_of(ACC[1], 16, z)))
        mf.append("v_mfma_f32_32x32x16_bf16 %s, %s, %s, %s" % (vr(ACC[2], 16), x, vr(WF[bf][2], 4), c_of(ACC[2], 16, z)))
        mf.append("v_mfma_f32_16x16x32_bf16 %s, v[20:23], %s, %s" % (vr(SX, 4), x, c_of(SX, 4, z)))
        if j == 0:
            for b in range(3):
                mf.append("v_mfma_f32_16x16x32_bf16 %s, v[20:23], %s, %s" % (vr(CSR[b], 4), vr(WF[bf][b], 4), c_of(CSR[b], 4, z)))
        va = []
        for q in range(4):
            va.append("v_and_b32 v%d, 0xffff0000, v%d" % (UT + 2 * q, XF[bf] + q))
            va.append("v_lshlrev_b32 v%d, 16, v%d" % (UT + 2 * q + 1, XF[bf] + q))
            va.append("v_fmac_f32 v28, v%d, v%d" % (UT + 2 * q, UT + 2 * q))
            va.append("v_fmac_f32 v29, v%d, v%d" % (UT + 2 * q + 1, UT + 2 * q + 1))
        per = [5, 5, 6, 0, 0, 0, 0]
        vi = 0
        for k, m in enumerate(mf):
            a(m)
            for _ in range(per[k]):
                if vi < len(va):
                    a(va[vi]); vi += 1
        while vi < len(va):
            a(va[vi]); vi += 1

    a("v_add_f32 v28, v28, v29")
    a("v_mov_b32 v29, v28")
    a("v_permlane32_swap_b32 v28, v29")
    a("v_add_f32 v28, v28, v29")
    a("v_mul_f32 v30, 0x3b000000, v%d" % SX)
    a("v_mul_f32 v28, 0x3b000000, v28")
    a("v_fma_f32 v28, -v30, v30, v28")
    a("v_max_f32 v28, 0, v28")
    a("v_add_f32 v28, %s, v28" % f32hex(1e-5))
    a("v_rsq_f32 v31, v28")
    a("v_cmp_gt_u32 vcc, 32, v1")
    a("v_lshlrev_b32 v24, 2, v1")
    a("v_add_u32 v24, s26, v24")
    a("v_cndmask_b32 v25, v%d, v%d, vcc" % (CSR[1], CSR[0]))
    a("ds_write_b32 v24, v25")
    a("ds_write_b32 v24, v%d offset:256" % CSR[2])
    a("v_mul_f32 v26, v31, v30")
    a("v_cndmask_b32 v26, v26, v31, vcc")
    a("ds_write_b32 v24, v26 offset:1024")
    a.wait_lg0()
    a("s_barrier")
    a("v_lshlrev_b32 v25, 2, v1")
    a("v_add_u32 v25, %d, v25" % XB)
    for w in range(4):
        a("ds_read_b32 v%d, v25 offset:%d" % (UT + w, w * 16384))
        a("ds_read_b32 v%d, v25 offset:%d" % (UT + 4 + w, w * 16384 + 256))
    a("v_lshrrev_b32 v26, 5, v1")
    a("v_lshlrev_b32 v26, 4, v26")
    a("v_add_u32 v26, s26, v26")
    RR, RM, CQ, CK = 136, 152, 168, 184
    for g in range(4):
        a("ds_read_b128 %s, v26 offset:%d" % (vr(RR + 4 * g, 4), 1024 + g * 32))
        a("ds_read_b128 %s, v26 offset:%d" % (vr(RM + 4 * g, 4), 1024 + 128 + g * 32))
    a("s_waitcnt lgkmcnt(8)")
    a("v_add_f32 v%d, v%d, v%d" % (UT, UT, UT + 1))
    a("v_add_f32 v%d, v%d, v%d" % (UT + 2, UT + 2, UT + 3))
    a("v_add_f32 v%d, v%d, v%d" % (UT, UT, UT + 2))
    a("ds_write_b32 v24, v%d offset:2048" % UT)
    a("v_add_f32 v%d, v%d, v%d" % (UT + 4, UT + 4, UT + 5))
    a("v_add_f32 v%d, v%d, v%d" % (UT + 6, UT + 6, UT + 7))
    a("v_add_f32 v%d, v%d, v%d" % (UT + 4, UT + 4, UT + 6))
    for g in range(4):
        a("ds_read_b128 %s, v26 offset:%d" % (vr(CQ + 4 * g, 4), 2048 + g * 32))
        a("ds_read_b128 %s, v26 offset:%d" % (vr(CK + 4 * g, 4), 2048 + 128 + g * 32))
    a.lg = []
    a("s_lshl_b32 s29, s22, 17")
    a("s_lshl_b32 s30, s23, 10")
    a("s_add_u32 s29, s29, s30")
    a("v_lshlrev_b32 v2, 4, v1")
    a("v_add_u32 v2, s29, v2")
    a("v_bfe_u32 v3, v1, 4, 1")
    a("v_lshlrev_b32 v3, 16, v3")
    a("v_lshrrev_b32 v4, 5, v1")
    a("v_lshl_add_u32 v3, v4, 8, v3")
    a("v_and_b32 v4, 15, v1")
    a("v_lshl_add_u32 v3, v4, 4, v3")
    a("v_add_u32 v3, s29, v3")
    a("s_mov_b32 s31, %d" % VF)
    a("s_mov_b32 s32, %d" % KF)
    a("s_mov_b32 s33, %d" % (KF + 65536))
    a("s_mov_b32 s34, %d" % (QF + 65536))
    a("s_waitcnt lgkmcnt(8)")
    P = 40
    for r in range(16):
        a("v_mul_f32 v%d, v%d, v%d" % (RM + r, RM + r, UT + 4))
        a("v_fma_f32 v%d, v%d, v%d, -v%d" % (ACC[2] + r, ACC[2] + r, RR + r, RM + r))
    for r in range(8):
        a("v_cvt_pk_bf16_f32 v%d, v%d, v%d" % (P + r, ACC[2] + 2 * r, ACC[2] + 2 * r + 1))
    a("buffer_store_dwordx4 %s, v3, s[16:19], s31 offen" % vr(P, 4))
    a("buffer_store_dwordx4 %s, v3, s[16:19], s31 offen offset:512" % vr(P + 4, 4))
    a("s_waitcnt lgkmcnt(0)")
    for r in range(16):
        a("v_fma_f32 v%d, -v30, v%d, v%d" % (ACC[1] + r, CK + r, ACC[1] + r))
        a("v_mul_f32 v%d, v31, v%d" % (ACC[1] + r, ACC[1] + r))
    for r in range(8):
        a("v_cvt_pk_bf16_f32 v%d, v%d, v%d" % (P + 8 + r, ACC[1] + 2 * r, ACC[1] + 2 * r + 1))
    a("buffer_store_dwordx4 %s, v2, s[16:19], s32 offen" % vr(P + 8, 4))
    a("buffer_store_dwordx4 %s, v2, s[16:19], s33 offen" % vr(P + 12, 4))
    a("v_mul_f32 v27, %s, v31" % f32hex(0.25 * LOG2E))
    for r in range(16):
        a("v_fma_f32 v%d, -v30, v%d, v%d" % (ACC[0] + r, CQ + r, ACC[0] + r))
        a("v_mul_f32 v%d, v27, v%d" % (ACC[0] + r, ACC[0] + r))
    for r in range(8):
        a("v_cvt_pk_bf16_f32 v%d, v%d, v%d" % (P + 16 + r, ACC[0] + 2 * r, ACC[0] + 2 * r + 1))
    a("buffer_store_dwordx4 %s, v2, s[16:19], 0 offen" % vr(P + 16, 4))
    a("buffer_store_dwordx4 %s, v2, s[16:19], s34 offen" % vr(P + 20, 4))
    a("v_mul_f32 v24, v%d, v%d" % (ACC[1], ACC[1]))
    a("v_mul_f32 v25, v%d, v%d" % (ACC[1] + 8, ACC[1] + 8))
    for r in range(1, 8):
        a("v_fmac_f32 v24, v%d, v%d" % (ACC[1] + r, ACC[1] + r))
        a("v_fmac_f32 v25, v%d, v%d" % (ACC[1] + 8 + r, ACC[1] + 8 + r))
    a("v_permlane32_swap_b32 v24, v25")
    a("v_add_f32 v24, v24, v25")
    for sh in (1, 2, 4, 8):
        a("v_max_f32_dpp v24, v24, v24 row_shr:%d row_mask:0xf bank_mask:0xf bound_ctrl:0" % sh)
    a("v_max_f32_dpp v24, v24, v24 row_bcast:15 row_mask:0xa bank_mask:0xf")
    a("v_lshrrev_b32 v25, 5, v1")
    a("v_lshlrev_b32 v25, 8, v25")
    a("s_lshl_b32 s29, s22, 9")
    a("s_lshl_b32 s30, s23, 2")
    a("s_add_u32 s29, s29, s30")
    a("s_add_u32 s29, s29, %d" % KN)
    a("s_mov_b32 s36, 0x80000000")
    a("s_mov_b32 s37, 0x80000000")
    a("s_mov_b64 exec, s[36:37]")
    a("buffer_store_dword v24, v25, s[16:19], s29 offen")
    a.label("L_k1_end")
    a("s_endpgm")
    return kernel_text("k1_qkv_kernel", a, 200, 48)
```

```python
from common import *

def k2():
    a = Asm()
    KL, VL, PL = 0, 65536, 131072
    a("s_cmp_ge_u32 s2, 256")
    a("s_cbranch_scc1 L_k2_end")
    a("s_load_dwordx2 s[16:17], s[0:1], 72")
    a("s_load_dwordx2 s[40:41], s[0:1], 16")
    a("s_load_dwordx4 s[44:47], s[0:1], 32")
    a("s_load_dwordx2 s[42:43], s[0:1], 48")
    a("v_and_b32 v1, 63, v0")
    a("v_lshrrev_b32 v2, 6, v0")
    a("s_and_b32 s21, s2, 31")
    a("s_lshr_b32 s22, s2, 5")
    a("v_readfirstlane_b32 s20, v2")
    a("v_lshlrev_b32 v2, 4, v1")
    a("s_lshl_b32 s23, s21, 16")
    a("s_lshl_b32 s24, s20, 10")
    a("s_add_u32 s25, s23, s24")
    a("s_lshl_b32 s26, s22, 3")
    a("s_add_u32 s26, s26, s20")
    a("s_lshl_b32 s27, s26, 10")
    a("s_add_u32 s27, s27, s23")
    a("s_mov_b32 s18, 0x%x" % WS_BYTES)
    a("s_mov_b32 s19, 0x00020000")
    a("v_add_u32 v3, s25, v2")
    a("s_lshl_b32 s28, s21, 8")
    a("s_add_u32 s28, s28, %d" % KN)
    a("v_lshlrev_b32 v4, 2, v1")
    a("s_waitcnt lgkmcnt(0)")
    Q, NM, S, P, O, KFR, VFR = 8, 16, [32, 48], 64, 72, [88, 92], [96, 104]
    a("buffer_load_dwordx4 %s, v2, s[16:19], s27 offen" % vr(Q, 4), tag="q")
    a("buffer_load_dword v5, v4, s[16:19], s28 offen", tag="q")
    for c in range(8):
        a("s_mov_b32 s29, %d" % (KF + c * 8192))
        a("s_add_u32 m0, s24, %d" % (KL + c * 8192))
        a("buffer_load_dwordx4 v3, s[16:19], s29 offen lds", tag=("kv", c))
        a("s_mov_b32 s29, %d" % (VF + c * 8192))
        a("s_add_u32 m0, s24, %d" % (VL + c * 8192))
        a("buffer_load_dwordx4 v3, s[16:19], s29 offen lds", tag=("kv", c))
    a("s_lshl_b32 s30, s20, 12")
    a("s_add_u32 s30, s30, %d" % PL)
    a("v_lshrrev_b32 v6, 3, v1")
    a("v_and_b32 v7, 7, v1")
    a("v_lshlrev_b32 v7, 4, v7")
    a("v_bfe_u32 v112, v1, 2, 2")
    a("v_lshrrev_b32 v113, 5, v1")
    a("v_lshl_add_u32 v112, v113, 2, v112")
    a("v_lshlrev_b32 v112, 7, v112")
    a("v_and_b32 v113, 3, v1")
    a("v_lshl_add_u32 v112, v113, 3, v112")
    a("v_add_u32 v112, s30, v112")
    a("v_bfe_u32 v113, v1, 4, 1")
    a("s_sub_u32 s38, s2, 72")
    a("s_cmp_ge_u32 s2, 184")
    a("s_cselect_b32 s38, s38, s2")
    a("s_cmp_ge_u32 s2, 112")
    a("s_cbranch_scc1 L_k2_prep_plain")
    a("s_lshr_b32 s31, s2, 2")
    a("s_and_b32 s32, s2, 3")
    a("s_lshl_b32 s32, s32, 3")
    a("s_add_u32 s32, s32, s20")
    a("s_mul_i32 s33, s32, %d" % (16 * 3584))
    a("s_lshl_b32 s34, s31, 7")
    a("s_add_u32 s33, s33, s34")
    a("s_add_u32 s34, s33, %d" % (8 * 3584))
    a("v_mul_u32_u24 v6, 3584, v6")
    a("v_add_u32 v6, v6, v7")
    a("s_mov_b32 s48, s44")
    a("s_mov_b32 s49, s45")
    a("s_mov_b32 s50, %d" % (512 * 3584))
    a("s_mov_b32 s51, 0x00020000")
    a("s_mov_b32 s52, s46")
    a("s_mov_b32 s53, s47")
    a("s_mov_b32 s54, %d" % (512 * 3584))
    a("s_mov_b32 s55, 0x00020000")
    a("s_mov_b32 m0, s30")
    a("buffer_load_dwordx4 v6, s[48:51], s33 offen lds", tag="prep")
    a("s_add_u32 m0, s30, 1024")
    a("buffer_load_dwordx4 v6, s[48:51], s34 offen lds", tag="prep")
    a("s_add_u32 m0, s30, 2048")
    a("buffer_load_dwordx4 v6, s[52:55], s33 offen lds", tag="prep")
    a("s_add_u32 m0, s30, 3072")
    a("buffer_load_dwordx4 v6, s[52:55], s34 offen lds", tag="prep")
    a("v_lshl_add_u32 v112, v113, 11, v112")
    a("v_add_u32 v113, 32, v112")
    a("v_add_u32 v114, 64, v112")
    a("v_add_u32 v115, 96, v112")
    a("s_lshl_b32 s33, s31, 17")
    a("s_lshl_b32 s34, s32, 10")
    a("s_add_u32 s33, s33, s34")
    a("s_add_u32 s56, s33, %d" % WGUF)
    a("s_add_u32 s57, s56, 32768")
    a("s_add_u32 s58, s56, 65536")
    a("s_add_u32 s59, s56, 98304")
    a("s_branch L_k2_prep_done")
    a.label("L_k2_prep_plain")
    a.vm = a.vm[:-4]
    a("s_cmp_ge_u32 s38, 128")
    a("s_cselect_b32 s48, s42, s40")
    a("s_cselect_b32 s49, s43, s41")
    a("s_mov_b32 s50, %d" % (512 * 1024))
    a("s_cselect_b32 s50, %d, s50" % (1792 * 1024))
    a("s_mov_b32 s51, 0x00020000")
    a("s_mov_b32 s31, 112")
    a("s_cselect_b32 s31, 128, s31")
    a("s_mov_b32 s35, %d" % WDF)
    a("s_mov_b32 s36, %d" % WOF)
    a("s_cselect_b32 s35, s35, s36")
    a("s_cselect_b32 s36, 112, 32")
    a("s_sub_u32 s31, s38, s31")
    a("s_and_b32 s32, s31, 7")
    a("s_lshr_b32 s31, s31, 3")
    a("s_lshl_b32 s31, s31, 4")
    a("s_lshl_b32 s33, s20, 1")
    a("s_add_u32 s31, s31, s33")
    a("s_lshl_b32 s33, s31, 14")
    a("s_lshl_b32 s34, s32, 7")
    a("s_add_u32 s33, s33, s34")
    a("v_lshl_add_u32 v6, v6, 10, v7")
    for i in range(4):
        a("s_add_u32 m0, s30, %d" % (i * 1024))
        a("s_add_u32 s34, s33, %d" % (i * 8192))
        a("buffer_load_dwordx4 v6, s[48:51], s34 offen lds", tag="prep")
    a("v_lshl_add_u32 v112, v113, 5, v112")
    a("v_add_u32 v113, 64, v112")
    a("v_add_u32 v114, 2048, v112")
    a("v_add_u32 v115, 2112, v112")
    a("s_lshl_b32 s32, s32, 1")
    a("s_mul_i32 s32, s32, s36")
    a("s_add_u32 s32, s32, s31")
    a("s_lshl_b32 s32, s32, 10")
    a("s_add_u32 s56, s35, s32")
    a("s_lshl_b32 s36, s36, 10")
    a("s_add_u32 s57, s56, s36")
    a("s_add_u32 s58, s56, 1024")
    a("s_add_u32 s59, s57, 1024")
    a.label("L_k2_prep_done")
    a("v_mov_b32 v6, 0x3f803f80")
    for b in range(2):
        for r in range(8):
            a("v_mov_b32 v%d, v6" % (VFR[b] + r))
    a("s_mov_b32 s60, 0x0000ffff")
    a("s_mov_b32 s61, 0x0000ffff")
    a("v_lshrrev_b32 v6, 5, v1")
    a("v_lshlrev_b32 v6, 8, v6")
    a("v_and_b32 v7, 15, v1")
    a("v_lshl_add_u32 v6, v7, 4, v6")
    a("v_add_u32 v6, %d, v6" % VL)
    a("v_mov_b32 v7, v2")
    a.wait_vm("q")
    a("v_mov_b32 v12, 0")
    for r in range(4):
        a("v_dot2c_f32_bf16 v12, v%d, v%d" % (Q + r, Q + r))
    for sh in (1, 2, 4, 8):
        a("v_max_f32_dpp v5, v5, v5 row_shr:%d row_mask:0xf bank_mask:0xf bound_ctrl:0" % sh)
    a("v_max_f32_dpp v5, v5, v5 row_bcast:15 row_mask:0xa bank_mask:0xf")
    a("v_max_f32_dpp v5, v5, v5 row_bcast:31 row_mask:0xc bank_mask:0xf")
    a("v_mov_b32 v13, v12")
    a("v_permlane32_swap_b32 v12, v13")
    a("v_add_f32 v12, v12, v13")
    a("v_readlane_b32 s62, v5, 63")
    a("v_mul_f32 v12, s62, v12")
    a("v_sqrt_f32 v12, v12")
    a("v_mul_f32 v12, %s, v12" % f32hex(-1.01))
    for r in range(16):
        a("v_mov_b32 v%d, v12" % (NM + r))
    for r in range(16):
        a("v_mov_b32 v%d, 0" % (O + r))
    for r in range(4, 8):
        a("v_mov_b32 v%d, 0" % (P + r))
    a.wait_vm(("kv", 0))
    n_b1 = a.vm_n(("kv", 2))
    a("s_barrier")

    def k_read(t, off):
        a("ds_read_b128 %s, v7 offset:%d" % (vr(KFR[t % 2], 4), KL + off * 1024))
    def v_read(t, off):
        a("s_mov_b64 exec, s[60:61]")
        a("ds_read_b128 %s, v6 offset:%d" % (vr(VFR[t % 2], 4), off * 1024))
        a("ds_read_b128 %s, v6 offset:%d" % (vr(VFR[t % 2] + 4, 4), off * 1024 + 512))
        a("s_mov_b64 exec, -1")
    def qk(t):
        a("v_mfma_f32_32x32x16_bf16 %s, %s, %s, %s" % (vr(S[t % 2], 16), vr(KFR[t % 2], 4), vr(Q, 4), vr(NM, 16)))
    def pv(t, mm):
        a("v_mfma_f32_32x32x16_bf16 %s, %s, %s, %s" % (vr(O, 16), vr(VFR[t % 2] + 4 * mm, 4), vr(P + 4 * mm, 4), vr(O, 16)))
    k_read(0, 0)
    k_read(1, 1)
    v_read(0, 0)
    a("s_mov_b32 s63, 0")
    a("s_waitcnt lgkmcnt(3)")
    qk(0)
    a("s_nop 7")
    a.raw(".p2align 6")
    a.label("L_k2_loop")
    for t in range(8):
        s = S[t % 2]
        def e(i): a("v_exp_f32 v%d, v%d" % (s + i, s + i))
        def c(i): a("v_cvt_pk_bf16_f32 v%d, v%d, v%d" % (P + i, s + 2 * i, s + 2 * i + 1))
        a("s_waitcnt lgkmcnt(0)")
        qk(t + 1)
        if t == 6:
            a("s_cmp_lt_u32 s63, 2")
            a("s_cbranch_scc1 L_k2_sync")
            a.label("L_k2_sync_back")
        k_read(t + 2, t + 2)
        e(0); e(1)
        pv(t - 1, 1)
        e(2)
        v_read(t + 1, t + 1)
        c(0); e(3); e(4); c(1); e(5); e(6); c(2); e(7); e(8); c(3); e(9); e(10)
        pv(t, 0)
        c(4); e(11); e(12); c(5); e(13); e(14); c(6); e(15)
        if t == 7:
            a("v_add_u32 v7, 8192, v7")
            a("v_add_u32 v6, 8192, v6")
            a("s_add_u32 s63, s63, 1")
        else:
            a("s_nop 0")
        c(7)
    a("s_cmp_lt_u32 s63, 8")
    a("s_cbranch_scc1 L_k2_loop")
    a("s_nop 1")
    pv(7, 1)
    a("s_waitcnt vmcnt(0) lgkmcnt(0)")
    for q in range(4):
        for t in range(2):
            a("ds_read_b64_tr_b16 %s, v%d offset:%d" % (vr(S[0] + 4 * q + 2 * t, 2), 112 + q, t * 1024))
    for q in range(4):
        a("s_waitcnt lgkmcnt(%d)" % (6 - 2 * q))
        a("buffer_store_dwordx4 %s, v2, s[16:19], s%d offen" % (vr(S[0] + 4 * q, 4), 56 + q))
    a("s_nop 15")
    L = O + 8
    a("v_cmp_nle_f32 vcc, %s, v%d" % (f32hex(2.0 ** -64), L))
    a("s_nop 4")
    a("s_cbranch_vccnz L_k2_fallback")
    a.label("L_k2_fin")
    a("v_rcp_f32 v12, v%d" % L)
    for r in range(8):
        a("v_mul_f32 v%d, v%d, v12" % (O + r, O + r))
    for r in range(4):
        a("v_cvt_pk_bf16_f32 v%d, v%d, v%d" % (P + r, O + 2 * r, O + 2 * r + 1))
    a("s_lshl_b32 s29, s26, 15")
    a("s_lshl_b32 s30, s21, 10")
    a("s_add_u32 s29, s29, s30")
    a("s_add_u32 s29, s29, %d" % OF)
    a("buffer_store_dwordx4 %s, v2, s[16:19], s29 offen" % vr(P, 4))
    a.label("L_k2_end")
    a("s_endpgm")
    a.label("L_k2_sync")
    a("s_cmp_eq_u32 s63, 0")
    a("s_cbranch_scc0 L_k2_sync1")
    a("s_waitcnt vmcnt(%d)" % n_b1)
    a("s_barrier")
    a("s_branch L_k2_sync_back")
    a.label("L_k2_sync1")
    a("s_waitcnt vmcnt(0)")
    a("s_barrier")
    a("s_branch L_k2_sync_back")
    a.label("L_k2_fallback")
    a("v_mov_b32 v7, v2")
    a("v_mov_b32 v12, 0xff800000")
    a("s_mov_b32 s63, 0")
    a.label("L_k2_fb_loop")
    a("ds_read_b128 %s, v7" % vr(KFR[0], 4))
    a("v_add_u32 v7, 1024, v7")
    a("s_waitcnt lgkmcnt(0)")
    a("v_mfma_f32_32x32x16_bf16 %s, %s, %s, 0" % (vr(S[0], 16), vr(KFR[0], 4), vr(Q, 4)))
    for r in range(0, 16, 2):
        a("v_max3_f32 v12, v12, v%d, v%d" % (S[0] + r, S[0] + r + 1))
    a("s_add_u32 s63, s63, 1")
    a("s_cmp_lt_u32 s63, 64")
    a("s_cbranch_scc1 L_k2_fb_loop")
    a("v_mov_b32 v13, v12")
    a("v_permlane32_swap_b32 v12, v13")
    a("v_max_f32 v12, v12, v13")
    a("v_sub_f32 v12, 0, v12")
    for r in range(16):
        a("v_mov_b32 v%d, v12" % (NM + r))
    for r in range(16):
        a("v_mov_b32 v%d, 0" % (O + r))
    a("v_mov_b32 v7, v2")
    a("v_subrev_u32 v6, 65536, v6")
    a("s_mov_b32 s63, 0")
    a.label("L_k2_fb2_loop")
    a("ds_read_b128 %s, v7" % vr(KFR[0], 4))
    v_read(0, 0)
    a("v_add_u32 v7, 1024, v7")
    a("v_add_u32 v6, 1024, v6")
    a("s_waitcnt lgkmcnt(0)")
    qk(0)
    for r in range(16):
        a("v_exp_f32 v%d, v%d" % (S[0] + r, S[0] + r))
    for r in range(8):
        a("v_cvt_pk_bf16_f32 v%d, v%d, v%d" % (P + r, S[0] + 2 * r, S[0] + 2 * r + 1))
    pv(0, 0)
    pv(0, 1)
    a("s_add_u32 s63, s63, 1")
    a("s_cmp_lt_u32 s63, 64")
    a("s_cbranch_scc1 L_k2_fb2_loop")
    a("s_nop 15")
    a("s_branch L_k2_fin")
    return kernel_text("k2_attn_kernel", a, 120, 72)
```

```python
from common import *

def reduce_4waves(a, ACC, areg, T, vaddr_w, vaddr_r, wave_s):
    pass

def k35(which):
    a = Asm()
    nm = "k%d" % which
    KS = 32 if which == 3 else 112
    KW = KS // 4
    BBASE = OF if which == 3 else AF
    ABASE = WOF if which == 3 else WDF
    NWG = 256
    if which == 3:
        a("s_cmp_ge_u32 s2, 284")
        a("s_cbranch_scc1 L_%s_end" % nm)
    else:
        a("s_cmp_ge_u32 s2, 256")
        a("s_cbranch_scc1 L_%s_end" % nm)
    a("s_load_dwordx2 s[16:17], s[0:1], 72")
    if which == 3:
        a("s_load_dwordx2 s[8:9], s[0:1], 0")
    else:
        a("s_load_dwordx2 s[8:9], s[0:1], 56")
    a("v_and_b32 v1, 63, v0")
    a("v_lshrrev_b32 v2, 6, v0")
    a("s_mov_b32 s18, 0x%x" % WS_BYTES)
    a("s_mov_b32 s19, 0x00020000")
    a("v_readfirstlane_b32 s20, v2")
    a("v_lshlrev_b32 v2, 4, v1")
    a("s_mov_b32 s10, 0x200000")
    a("s_mov_b32 s11, 0x00020000")
    if which == 3:
        a("s_cmp_ge_u32 s2, 256")
        a("s_cbranch_scc1 L_k3_colsum")
    a("s_and_b32 s21, s2, 7")
    a("s_lshl_b32 s21, s21, 2")
    a("s_lshr_b32 s22, s2, 3")
    a("s_and_b32 s22, s22, 3")
    a("s_add_u32 s21, s21, s22")
    a("s_lshr_b32 s22, s2, 5")
    a("s_mul_i32 s23, s21, %d" % (2 * KS * 1024))
    a("s_mul_i32 s24, s20, %d" % (KW * 1024))
    a("s_add_u32 s23, s23, s24")
    a("s_add_u32 s24, s24, %d" % ABASE)
    a("s_add_u32 s23, s23, %d" % BBASE)
    a("s_mul_i32 s25, s22, %d" % (2 * KS * 1024))
    a("s_add_u32 s24, s24, s25")
    a("v_add_u32 v4, s24, v2")
    a("v_add_u32 v5, %d, v4" % (KS * 1024))
    a("v_add_u32 v6, s23, v2")
    a("v_add_u32 v7, %d, v6" % (KS * 1024))
    a("s_waitcnt lgkmcnt(0)")
    WIN = min(KW, 14)
    FB = 16
    def frag(i, j):
        return FB + ((i % WIN) * 4 + j) * 4
    def loads(i):
        if i % 4 == 0 and i > 0:
            a("s_mov_b32 s26, %d" % (i * 1024))
        so = "0" if i < 4 else "s26"
        for j in range(4):
            a("buffer_load_dwordx4 %s, v%d, s[16:19], %s offen offset:%d" % (vr(frag(i, j), 4), 4 + j, so, (i % 4) * 1024), tag=("f", i))
    for i in range(WIN):
        loads(i)
        if i == 1:
            a("s_and_b32 s27, s20, 1")
            a("s_lshr_b32 s28, s20, 1")
            a("s_lshl_b32 s29, s22, 1")
            a("s_add_u32 s27, s27, s29")
            a("s_lshl_b32 s29, s21, 1")
            a("s_add_u32 s28, s28, s29")
    RES = FB + WIN * 16
    if which == 3:
        a("v_and_b32 v8, 31, v1")
        a("v_lshlrev_b32 v8, 10, v8")
        a("v_lshrrev_b32 v9, 5, v1")
        a("v_lshl_add_u32 v8, v9, 3, v8")
        a("s_lshl_b32 s29, s28, 15")
        a("s_lshl_b32 s30, s27, 6")
        a("s_add_u32 s29, s29, s30")
        for g in range(4):
            a("buffer_load_dwordx2 %s, v8, s[8:11], s29 offen offset:%d" % (vr(RES + 2 * g, 2), g * 16), tag="res")
    else:
        a("s_lshl_b32 s29, s28, 15")
        a("s_lshl_b32 s30, s27, 11")
        a("s_add_u32 s29, s29, s30")
        a("s_add_u32 s29, s29, %d" % HF)
        a("buffer_load_dwordx4 %s, v2, s[16:19], s29 offen" % vr(RES, 4), tag="res")
        a("buffer_load_dwordx4 %s, v2, s[16:19], s29 offen offset:1024" % vr(RES + 4, 4), tag="res")
    ACC = [0, 16, 32, 48]
    for i in range(KW):
        a.wait_vm(("f", i))
        for bt in range(2):
            for an in range(2):
                acc = ar(ACC[an + 2 * bt], 16)
                a("v_mfma_f32_32x32x16_bf16 %s, %s, %s, %s" % (acc, vr(frag(i, an), 4), vr(frag(i, 2 + bt), 4), "0" if i == 0 else acc))
        if i + WIN < KW:
            loads(i + WIN)
    a("s_lshl_b32 s29, s20, 12")
    a("v_add_u32 v8, s29, v2")
    a("s_lshl_b32 s29, s20, 14")
    a("v_add_u32 v9, s29, v2")
    for blk in range(4):
        for q in range(4):
            a("ds_write_b128 v8, %s offset:%d" % (ar(ACC[blk] + 4 * q, 4), blk * 16384 + q * 1024))
    a.wait_lg0()
    a("s_barrier")
    R = FB
    for q in range(4):
        for src in range(4):
            a("ds_read_b128 %s, v9 offset:%d" % (vr(R + src * 16 + 4 * q, 4), src * 4096 + q * 1024), tag=("rd", q))
    a.wait_vm("res")
    U = R + 64
    for r in range(8):
        a("v_lshlrev_b32 v%d, 16, v%d" % (U + 2 * r, RES + r))
        a("v_and_b32 v%d, 0xffff0000, v%d" % (U + 2 * r + 1, RES + r))
    for q in range(4):
        a.wait_lg(("rd", q))
        for e in range(4):
            r = 4 * q + e
            a("v_add_f32 v%d, v%d, v%d" % (R + r, R + r, R + 16 + r))
            a("v_add_f32 v%d, v%d, v%d" % (R + 32 + r, R + 32 + r, R + 48 + r))
            a("v_add_f32 v%d, v%d, v%d" % (U + r, U + r, R + r))
            a("v_add_f32 v%d, v%d, v%d" % (U + r, U + r, R + 32 + r))
    Pk = U + 16
    for r in range(8):
        a("v_cvt_pk_bf16_f32 v%d, v%d, v%d" % (Pk + r, U + 2 * r, U + 2 * r + 1))
    if which == 3:
        a("s_lshl_b32 s29, s28, 15")
        a("s_lshl_b32 s30, s27, 11")
        a("s_add_u32 s29, s29, s30")
        a("s_add_u32 s29, s29, %d" % HF)
        a("buffer_store_dwordx4 %s, v2, s[16:19], s29 offen" % vr(Pk, 4))
        a("buffer_store_dwordx4 %s, v2, s[16:19], s29 offen offset:1024" % vr(Pk + 4, 4))
        a("v_mov_b32 v10, 0")
        a("v_mov_b32 v11, 0")
        a("v_mov_b32 v12, 0x3f803f80")
        for r in range(8):
            a("v_dot2c_f32_bf16 v10, v%d, v12" % (Pk + r))
            a("v_dot2c_f32_bf16 v11, v%d, v%d" % (Pk + r, Pk + r))
        a("v_permlane32_swap_b32 v10, v11")
        a("v_add_f32 v10, v10, v11")
        a("v_and_b32 v8, 31, v1")
        a("v_lshlrev_b32 v8, 2, v8")
        a("v_lshrrev_b32 v9, 5, v1")
        a("v_lshl_add_u32 v8, v9, 13, v8")
        a("s_lshl_b32 s29, s27, 14")
        a("s_lshl_b32 s30, s28, 7")
        a("s_add_u32 s29, s29, s30")
        a("s_add_u32 s29, s29, %d" % ST)
        a("buffer_store_dword v10, v8, s[16:19], s29 offen")
        a("s_endpgm")
        a.label("L_k3_colsum")
        a.vm = []
        a("s_sub_u32 s21, s2, 256")
        a("s_lshl_b32 s21, s21, 2")
        a("s_add_u32 s21, s21, s20")
        a("s_lshl_b32 s22, s21, 15")
        a("s_add_u32 s22, s22, %d" % WGUF)
        a("v_add_u32 v4, s22, v2")
        a("v_lshrrev_b32 v8, 4, v1")
        a("v_lshrrev_b32 v9, 2, v1")
        a("v_xor_b32 v8, v8, v9")
        a("v_and_b32 v8, 1, v8")
        a("v_cmp_eq_u32 vcc, 0, v8")
        a("v_mov_b32 v9, 0x3f803f80")
        a("v_cndmask_b32 v8, 0, v9, vcc")
        a("v_mov_b32 v9, v8")
        a("v_mov_b32 v10, v8")
        a("v_mov_b32 v11, v8")
        a("s_waitcnt lgkmcnt(0)")
        for i in range(32):
            if i % 4 == 0:
                a("s_mov_b32 s26, %d" % (i * 1024))
            a("buffer_load_dwordx4 %s, v4, s[16:19], s26 offen offset:%d" % (vr(FB + 4 * i, 4), (i % 4) * 1024), tag=("c", i))
        for i in range(32):
            if i % 4 == 0:
                a.wait_vm(("c", i + 3))
            a("v_mfma_f32_16x16x32_bf16 v[12:15], v[8:11], %s, %s" % (vr(FB + 4 * i, 4), "0" if i == 0 else "v[12:15]"))
        a("v_lshlrev_b32 v4, 2, v1")
        a("s_lshl_b32 s22, s21, 7")
        a("s_add_u32 s22, s22, %d" % CS)
        a("s_mov_b32 exec_hi, 0")
        a("buffer_store_dword v12, v4, s[16:19], s22 offen")
    else:
        a("v_permlane32_swap_b32 v%d, v%d" % (Pk + 0, Pk + 2))
        a("v_permlane32_swap_b32 v%d, v%d" % (Pk + 1, Pk + 3))
        a("v_permlane32_swap_b32 v%d, v%d" % (Pk + 4, Pk + 6))
        a("v_permlane32_swap_b32 v%d, v%d" % (Pk + 5, Pk + 7))
        a("v_and_b32 v8, 31, v1")
        a("v_lshlrev_b32 v8, 10, v8")
        a("v_lshrrev_b32 v9, 5, v1")
        a("v_lshl_add_u32 v8, v9, 4, v8")
        a("s_lshl_b32 s29, s28, 15")
        a("s_lshl_b32 s30, s27, 6")
        a("s_add_u32 s29, s29, s30")
        a("buffer_store_dwordx4 %s, v8, s[8:11], s29 offen" % vr(Pk, 4))
        a("buffer_store_dwordx4 %s, v8, s[8:11], s29 offen offset:32" % vr(Pk + 4, 4))
    a.label("L_%s_end" % nm)
    a("s_endpgm")
    nv = max(RES + 8, Pk + 8, FB + 128 if which == 3 else 0)
    nv = (nv + 3) // 4 * 4
    name = "k3_wo_kernel" if which == 3 else "k5_down_kernel"
    return kernel_text(name, a, nv, 40, accum=nv, nagpr=64)
```

```python
from common import *

def k4():
    a = Asm()
    a("s_cmp_ge_u32 s2, 256")
    a("s_cbranch_scc1 L_k4_end")
    a("s_load_dwordx2 s[16:17], s[0:1], 72")
    a("v_and_b32 v1, 63, v0")
    a("v_lshrrev_b32 v2, 6, v0")
    a("s_mov_b32 s18, 0x%x" % WS_BYTES)
    a("s_mov_b32 s19, 0x00020000")
    a("v_readfirstlane_b32 s20, v2")
    a("v_lshlrev_b32 v2, 4, v1")
    a("s_and_b32 s21, s2, 7")
    a("s_lshl_b32 s21, s21, 1")
    a("s_lshr_b32 s22, s2, 3")
    a("s_and_b32 s22, s22, 1")
    a("s_add_u32 s21, s21, s22")
    a("s_lshr_b32 s22, s2, 4")
    a("s_lshl_b32 s23, s21, 2")
    a("s_add_u32 s23, s23, s20")
    a("s_lshl_b32 s24, s23, 15")
    a("s_add_u32 s24, s24, %d" % HF)
    a("v_add_u32 v3, s24, v2")
    a("s_mul_i32 s25, s22, %d" % (7 * 32768))
    a("s_lshl_b32 s26, s20, 10")
    a("s_add_u32 s25, s25, s26")
    a("s_add_u32 s25, s25, %d" % WGUF)
    a("v_add_u32 v4, s25, v2")
    a("s_waitcnt lgkmcnt(0)")
    HB = 8
    NSLOT = 5
    SLOT = 28672
    def dma_w(cc):
        for b in range(7):
            a("s_mov_b32 s27, %d" % (b * 32768 + cc * 4096))
            a("s_add_u32 m0, s26, %d" % ((cc % NSLOT) * SLOT + b * 4096))
            a("buffer_load_dwordx4 v4, s[16:19], s27 offen lds", tag=("w", cc))
    def ld_h(cc):
        if cc > 0:
            a("s_mov_b32 s28, %d" % (cc * 4096))
        for i in range(4):
            a("buffer_load_dwordx4 %s, v3, s[16:19], %s offen offset:%d" % (vr(HB + (4 * cc + i) * 4, 4), "0" if cc == 0 else "s28", i * 1024), tag=("h", cc))
    ld_h(0); dma_w(0)
    a("v_and_b32 v5, 31, v1")
    a("v_lshlrev_b32 v5, 2, v5")
    a("v_lshrrev_b32 v6, 5, v1")
    a("v_lshl_add_u32 v5, v6, 13, v5")
    a("s_lshl_b32 s29, s23, 7")
    a("s_add_u32 s29, s29, %d" % ST)
    a("v_add_u32 v5, s29, v5")
    WFB = 136
    STR = 192
    for nb in range(16):
        a("s_mov_b32 s29, %d" % (nb * 16384))
        a("buffer_load_dword v%d, v5, s[16:19], s29 offen" % (STR + nb), tag="st")
    for cc in range(1, 4):
        ld_h(cc); dma_w(cc)
    a.wait_vm("st")
    ld_h(4); dma_w(4)
    for k in (8, 4, 2, 1):
        for i in range(k):
            a("v_add_f32 v%d, v%d, v%d" % (STR + i, STR + i, STR + i + k))
    a("v_mov_b32 v%d, v%d" % (STR + 1, STR))
    a("v_permlane32_swap_b32 v%d, v%d" % (STR, STR + 1))
    MU, RS, C1, KK = 208, 209, 210, 211
    a("v_mul_f32 v%d, 0x3b000000, v%d" % (MU, STR))
    a("v_mul_f32 v%d, 0x3b000000, v%d" % (STR + 1, STR + 1))
    a("v_fma_f32 v%d, -v%d, v%d, v%d" % (STR + 1, MU, MU, STR + 1))
    a("v_max_f32 v%d, 0, v%d" % (STR + 1, STR + 1))
    a("v_add_f32 v%d, %s, v%d" % (STR + 1, f32hex(1e-5), STR + 1))
    a("v_rsq_f32 v%d, v%d" % (RS, STR + 1))
    a("v_sqrt_f32 v%d, v%d" % (KK, STR + 1))
    a("v_mul_f32 v%d, %s, v%d" % (C1, f32hex(-LOG2E), RS))
    a("v_mul_f32 v%d, %s, v%d" % (KK, f32hex(-LOG2E), KK))
    a("v_mov_b32 v7, v2")
    a("v_add_u32 v6, 0x10000, v2")
    a("v_add_u32 v5, 0x20000, v2")
    def lds_addr(off):
        if off < 65536: return "v7", off
        if off < 131072: return "v6", off - 65536
        return "v5", off - 131072
    def reads(n):
        cc, kk = n // 4, n % 4
        for b in range(7):
            r, o = lds_addr((cc % NSLOT) * SLOT + b * 4096 + kk * 1024)
            a("ds_read_b128 %s, %s offset:%d" % (vr(WFB + (n % 2) * 28 + b * 4, 4), r, o), tag=("r", n))
    a.wait_vm([("w", 0), ("h", 0)])
    a("s_barrier")
    reads(0)
    for n in range(32):
        cc, kk = n // 4, n % 4
        if n + 1 < 32:
            if (n + 1) % 4 == 0:
                a.wait_vm([("w", cc + 1), ("h", cc + 1)])
                a("s_barrier")
                if cc >= 1 and cc - 1 + NSLOT < 8:
                    dma_w(cc - 1 + NSLOT)
                if cc + 5 < 8:
                    ld_h(cc + 5)
            reads(n + 1)
        for b in range(7):
            if b == 0:
                a.wait_lg(("r", n))
            acc = ar(16 * b, 16)
            a("v_mfma_f32_32x32x16_bf16 %s, %s, %s, %s" % (acc, vr(WFB + (n % 2) * 28 + b * 4, 4), vr(HB + 4 * n, 4), "0" if n == 0 else acc))
        if n == 26:
            pass
    a("v_lshrrev_b32 v3, 5, v1")
    a("v_lshlrev_b32 v3, 4, v3")
    a("s_mul_i32 s29, s22, %d" % (7 * 128))
    a("s_add_u32 s29, s29, %d" % CS)
    for b in range(7):
        for g in range(4):
            a("buffer_load_dwordx4 %s, v3, s[16:19], s29 offen offset:%d" % (vr(HB + 16 * b + 4 * g, 4), b * 128 + g * 32), tag=("cs", b))
    a("s_mul_i32 s30, s23, %d" % (112 * 1024))
    a("s_mul_i32 s31, s22, %d" % (7 * 1024))
    a("s_add_u32 s30, s30, s31")
    a("s_add_u32 s30, s30, %d" % AF)
    a("s_add_u32 s31, s30, 4096")
    T = WFB
    for b in range(7):
        a.wait_vm(("cs", b))
        G, U, E = T, T + 8, T + 16
        for r in range(8):
            a("v_accvgpr_read_b32 v%d, a%d" % (G + r, 16 * b + r))
            a("v_accvgpr_read_b32 v%d, a%d" % (U + r, 16 * b + 8 + r))
        for r in range(8):
            a("v_fma_f32 v%d, -v%d, v%d, v%d" % (G + r, MU, HB + 16 * b + r, G + r))
            a("v_fma_f32 v%d, -v%d, v%d, v%d" % (U + r, MU, HB + 16 * b + 8 + r, U + r))
        for r in range(8):
            a("v_mul_f32 v%d, v%d, v%d" % (G + r, C1, G + r))
        for r in range(8):
            a("v_exp_f32 v%d, v%d" % (E + r, G + r))
        for r in range(8):
            a("v_mul_f32 v%d, v%d, v%d" % (U + r, G + r, U + r))
            a("v_fma_f32 v%d, v%d, v%d, v%d" % (E + r, E + r, KK, KK))
        for r in range(8):
            a("v_rcp_f32 v%d, v%d" % (E + r, E + r))
        for r in range(8):
            a("v_mul_f32 v%d, v%d, v%d" % (U + r, U + r, E + r))
        PK = T + 24 + (b % 2) * 4
        for r in range(4):
            a("v_cvt_pk_bf16_f32 v%d, v%d, v%d" % (PK + r, U + 2 * r, U + 2 * r + 1))
        a("buffer_store_dwordx4 %s, v2, s[16:19], %s offen offset:%d" % (vr(PK, 4), "s30" if b < 4 else "s31", (b % 4) * 1024))
    a.label("L_k4_end")
    a("s_endpgm")
    return kernel_text("k4_gateup_kernel", a, 212, 40, accum=212, nagpr=112)
```

```python
import sys
from common import *
import k1, k2, k35, k4
NAME = "sequential_preLN__softmax_full_mha__swiglu_ffn__prompt"
ref = open("cdna_kernels/%s.s.ref" % NAME).read()
hdr = []
for line in ref.split("\n"):
    if line.startswith(";") and "@launch" not in line and "Override launch" not in line and "grid=ceil" not in line:
        hdr.append(line)
    elif not line.startswith(";"):
        break
ks = [(k1.k1(), "k1_qkv_kernel", 256, 256, 163840),
      (k2.k2(), "k2_attn_kernel", 256, 512, 163840),
      (k35.k35(3), "k3_wo_kernel", 284, 256, 65536),
      (k4.k4(), "k4_gateup_kernel", 256, 256, 143360),
      (k35.k35(5), "k5_down_kernel", 256, 256, 65536)]
out = "\n".join(hdr) + "\n"
for (_, nm, g, b, lds) in ks:
    out += "; @launch kernel=%s grid=(%d,1,1) block=(%d,1,1) lds=%d\n" % (nm, g, b, lds)
out += '.amdgcn_target "amdgcn-amd-amdhsa--gfx950"\n.text\n'
for ((body, desc), *_r) in ks:
    out += body
out += '.section .rodata,"a"\n'
for ((body, desc), *_r) in ks:
    out += desc
dst = sys.argv[1] if len(sys.argv) > 1 else "cdna_kernels/%s.s" % NAME
open(dst, "w").write(out)
print("wrote", dst, len(out))
```

```python
from asmlib import *
MB = 1 << 20
QF = 0
KF = 2 * MB
VF = 4 * MB
OF = 6 * MB
HF = 8 * MB
AF = 10 * MB
WOF = 18 * MB
WGUF = 19 * MB
WDF = 23 * MB
KN = 25 * MB
ST = 25 * MB + 65536
CS = 26 * MB
WS_BYTES = 256 * MB
LOG2E = 1.4426950408889634
import struct
def f32hex(x):
    return "0x%08x" % struct.unpack("<I", struct.pack("<f", x))[0]
def vr(b, n):
    return "v[%d:%d]" % (b, b + n - 1)
def ar(b, n):
    return "a[%d:%d]" % (b, b + n - 1)
def srd(a, d, lo, nbytes):
    if d != lo:
        a("s_mov_b32 s%d, s%d" % (d, lo))
        a("s_mov_b32 s%d, s%d" % (d + 1, lo + 1))
    a("s_mov_b32 s%d, 0x%x" % (d + 2, nbytes))
    a("s_mov_b32 s%d, 0x00020000" % (d + 3))

import os
STAMP = bool(int(os.environ.get("STAMP", "0")))
TS = 28 * MB
def stamp(a, idx):
    if not STAMP: return
    a("s_memtime s[%d:%d]" % (72 + 2 * idx, 73 + 2 * idx))
    if idx == 0:
        a("s_memrealtime s[98:99]")
def stamp_store(a, kidx, n, wave_s="s20", vt=250):
    if not STAMP: return
    a("s_memrealtime s[100:101]")
    a("s_mov_b64 exec, -1")
    a("s_waitcnt lgkmcnt(0)")
    a("s_lshl_b32 s70, s2, 3")
    a("s_add_u32 s70, s70, %s" % wave_s)
    a("s_lshl_b32 s70, s70, 6")
    a("s_add_u32 s70, s70, %d" % (TS + kidx * 300 * 8 * 64))
    a("v_mov_b32 v0, 0")
    for i in range(n):
        a("v_mov_b32 v1, s%d" % (72 + 2 * i))
        a("buffer_store_dword v1, v0, s[16:19], s70 offen offset:%d" % (4 * i))
    a("v_mov_b32 v1, s98")
    a("buffer_store_dword v1, v0, s[16:19], s70 offen offset:56")
    a("v_mov_b32 v1, s100")
    a("buffer_store_dword v1, v0, s[16:19], s70 offen offset:60")
```

```python
from common import *
from k4 import split3, pack2

def k1(PD=int(os.environ.get("K1PD", 3))):
    a = Asm()
    NSLOT = 5
    a("s_cmp_ge_u32 s2, 256")
    a("s_cbranch_scc1 L_k1_end")
    stamp(a, 0)
    a("s_load_dwordx2 s[8:9], s[0:1], 0")
    a("s_load_dwordx2 s[12:13], s[0:1], 8")
    a("s_load_dwordx2 s[16:17], s[0:1], 72")
    a("v_and_b32 v1, 63, v0")
    a("v_lshrrev_b32 v40, 6, v0")
    a("s_and_b32 s21, s2, 6")
    a("s_lshl_b32 s21, s21, 2")
    a("s_lshr_b32 s22, s2, 3")
    a("s_and_b32 s22, s22, 7")
    a("v_readfirstlane_b32 s20, v40")
    a("s_add_u32 s21, s21, s22")
    a("s_and_b32 s22, s2, 1")
    a("s_lshl_b32 s22, s22, 2")
    a("s_lshr_b32 s23, s2, 6")
    a("s_add_u32 s22, s22, s23")
    a("s_lshl_b32 s24, s21, 16")
    a("s_lshl_b32 s25, s20, 14")
    a("s_add_u32 s24, s24, s25")
    a("v_lshrrev_b32 v40, 3, v1")
    a("v_lshlrev_b32 v41, 10, v40")
    a("v_add_u32 v41, s24, v41")
    a("v_and_b32 v42, 7, v1")
    a("v_lshrrev_b32 v43, 4, v1")
    a("v_xor_b32 v44, v42, v43")
    a("v_lshl_add_u32 v2, v44, 4, v41")
    a("v_xor_b32 v44, 4, v44")
    a("v_lshl_add_u32 v3, v44, 4, v41")
    a("v_add_u32 v3, 8192, v3")
    a("s_lshl_b32 s25, s20, 4")
    a("v_add_u32 v40, s25, v40")
    a("v_mul_u32_u24 v40, 3072, v40")
    a("v_and_b32 v43, 1, v43")
    a("v_lshlrev_b32 v43, 2, v43")
    a("v_xor_b32 v42, v42, v43")
    a("v_lshl_add_u32 v40, v42, 4, v40")
    a("s_lshl_b32 s25, s22, 7")
    a("v_add_u32 v4, s25, v40")
    a("s_lshl_b32 s27, s20, 11")
    a("s_mov_b32 s10, 0x200000")
    a("s_mov_b32 s11, 0x00020000")
    a("s_mov_b32 s14, %d" % (512 * 3072))
    a("s_mov_b32 s15, 0x00020000")
    a("s_mov_b32 s18, 0x%x" % WS_BYTES)
    a("s_mov_b32 s19, 0x00020000")
    a("s_waitcnt lgkmcnt(0)")

    def chunk_vmem(cc):
        base = (cc % NSLOT) * 32768
        ops = []
        for i in range(2):
            def f(i=i):
                a("s_add_u32 m0, s27, %d" % (base + i * 1024 + 1024 - cc * 128))
                a("s_sub_u32 m0, m0, 1024")
                a("buffer_load_dwordx4 v%d, s[8:11], 0 offen offset:%d lds" % (2 + i, cc * 128), tag=("c", cc))
            def f2(i=i):
                lit = base + i * 1024 - cc * 128
                if lit >= 0:
                    a("s_add_u32 m0, s27, %d" % lit)
                    a("buffer_load_dwordx4 v%d, s[8:11], 0 offen offset:%d lds" % (2 + i, cc * 128), tag=("c", cc))
                else:
                    a("s_add_u32 m0, s27, %d" % (base + i * 1024))
                    a("s_mov_b32 s28, %d" % (cc * 128))
                    a("buffer_load_dwordx4 v%d, s[8:11], s28 offen lds" % (2 + i), tag=("c", cc))
            ops.append(f2)
            for b in range(3):
                def g(i=i, b=b):
                    a("s_add_u32 m0, s27, %d" % (base + 8192 + b * 8192 + i * 1024 - b * 1024))
                    a("s_mov_b32 s28, %d" % (cc * 64 * 3072 + i * 8 * 3072))
                    a("buffer_load_dwordx4 v4, s[12:15], s28 offen offset:%d lds" % (b * 1024), tag=("c", cc))
                ops.append(g)
        return ops
    for cc in range(2):
        for f in chunk_vmem(cc): f()

    XA, WA = 8, 20
    a("s_and_b32 s30, s20, 1")
    a("s_lshr_b32 s31, s20, 1")
    a("v_and_b32 v40, 31, v1")
    a("v_lshrrev_b32 v41, 5, v1")
    a("v_bfe_u32 v42, v40, 1, 3")
    a("v_lshlrev_b32 v43, 7, v40")
    a("s_lshl_b32 s29, s30, 12")
    a("v_add_u32 v43, s29, v43")
    a("v_bfe_u32 v44, v1, 2, 2")
    a("v_lshl_add_u32 v45, v41, 3, v44")
    a("v_lshlrev_b32 v45, 7, v45")
    a("v_lshrrev_b32 v44, 1, v44")
    a("v_xor_b32 v44, s31, v44")
    a("v_lshl_add_u32 v45, v44, 6, v45")
    a("v_and_b32 v44, 3, v1")
    a("v_lshl_add_u32 v45, v44, 3, v45")
    a("v_bfe_u32 v44, v1, 4, 1")
    a("v_lshl_add_u32 v45, v44, 5, v45")
    for j in range(4):
        a("s_xor_b32 s29, s20, %d" % j)
        a("s_lshl_b32 s32, s29, 1")
        a("v_add_u32 v44, s32, v41")
        a("v_xor_b32 v44, v44, v42")
        a("v_lshl_add_u32 v%d, v44, 4, v43" % (XA + j))
        a("s_lshl_b32 s32, s29, 11")
        a("v_add_u32 v%d, s32, v45" % (WA + j))
        for g in (1, 2):
            a("v_add_u32 v%d, 0x%x, v%d" % (XA + j + 4 * g, g * 65536, XA + j))
            a("v_add_u32 v%d, 0x%x, v%d" % (WA + j + 4 * g, g * 65536, WA + j))
    for cc in range(2, PD):
        for f in chunk_vmem(cc): f()
    SEL = 32
    a("v_lshrrev_b32 v40, 4, v1")
    a("v_lshrrev_b32 v42, 2, v1")
    a("v_xor_b32 v40, v40, v42")
    a("v_and_b32 v40, 1, v40")
    a("v_cmp_eq_u32 vcc, 0, v40")
    a("v_mov_b32 v42, 0x3f803f80")
    a("v_cndmask_b32 v%d, 0, v42, vcc" % SEL)
    for r in range(1, 4):
        a("v_mov_b32 v%d, v%d" % (SEL + r, SEL))
    a("v_mov_b32 v36, 0")
    a("v_mov_b32 v37, 0")

    XF = [48, 52]
    WF = [[56, 60, 64], [68, 72, 76]]
    ACC = [80, 96, 112]
    SX, CSR = 128, [132, 136, 140]
    UT = 144
    def reads(n):
        cc, j = n // 4, n % 4
        bf = n % 2
        slot = cc % NSLOT
        g, so = slot // 2, (slot % 2) * 32768
        L = []
        for b in range(3):
            for t in range(2):
                L.append("ds_read_b64_tr_b16 %s, v%d offset:%d" % (vr(WF[bf][b] + 2 * t, 2), WA + j + 4 * g, so + 8192 + b * 8192 + t * 512))
            if b == 0:
                L.append("ds_read_b128 %s, v%d offset:%d" % (vr(XF[bf], 4), XA + j + 4 * g, so))
        return L
    stamp(a, 1)
    a.wait_vm(("c", 0))
    a("s_barrier")
    stamp(a, 2)
    if STAMP: a.wait_lg0()
    for x in reads(0): a(x, tag=("r", 0))
    side = []
    for n in range(32):
        cc, j = n // 4, n % 4
        bf = n % 2
        if j == 0 and cc + PD < 8:
            side += chunk_vmem(cc + PD)
        rd = []
        if n + 1 < 32:
            if (n + 1) % 4 == 0:
                a.wait_vm(("c", cc + 1))
                a("s_barrier")
            rd = reads(n + 1)
        a.wait_lg(("r", n))
        z = n == 0
        x = vr(XF[bf], 4)
        def c_of(base, cnt, first):
            return "0" if first else vr(base, cnt)
        mf = []
        mf.append("v_mfma_f32_32x32x16_bf16 %s, %s, %s, %s" % (vr(ACC[0], 16), vr(WF[bf][0], 4), x, c_of(ACC[0], 16, z)))
        mf.append("v_mfma_f32_32x32x16_bf16 %s, %s, %s, %s" % (vr(ACC[1], 16), vr(WF[bf][1], 4), x, c_of(ACC[1], 16, z)))
        mf.append("v_mfma_f32_32x32x16_bf16 %s, %s, %s, %s" % (vr(ACC[2], 16), x, vr(WF[bf][2], 4), c_of(ACC[2], 16, z)))
        if j in (0, 1):
            mf.append("v_mfma_f32_16x16x32_bf16 %s, %s, %s, %s" % (vr(SX, 4), vr(SEL, 4), x, c_of(SX, 4, z)))
        if j in (0, 2):
            for b in range(3):
                mf.append("v_mfma_f32_16x16x32_bf16 %s, %s, %s, %s" % (vr(CSR[b], 4), vr(SEL, 4), vr(WF[bf][b], 4), c_of(CSR[b], 4, z)))
        va = []
        if j in (0, 1):
            for q in range(4):
                va.append("v_and_b32 v%d, 0xffff0000, v%d" % (UT + 2 * q, XF[bf] + q))
                va.append("v_lshlrev_b32 v%d, 16, v%d" % (UT + 2 * q + 1, XF[bf] + q))
            for q in range(4):
                va.append("v_fmac_f32 v36, v%d, v%d" % (UT + 2 * q, UT + 2 * q))
                va.append("v_fmac_f32 v37, v%d, v%d" % (UT + 2 * q + 1, UT + 2 * q + 1))
        nside = 1 if j in (0, 1) else 3
        for k, m in enumerate(mf):
            a(m)
            slots = 6 if k < 3 else 2
            nr = (3, 2, 2)[k] if k < 3 else 0
            for _ in range(nr):
                if rd:
                    a(rd.pop(0), tag=("r", n + 1)); slots -= 1
            if k < 3 and side and nside > 0:
                side.pop(0)(); nside -= 1; slots -= 3
            while va and slots > 0:
                a(va.pop(0)); slots -= 1
        for x_ in va: a(x_)
        assert not rd
    assert not side

    stamp(a, 3)
    SC = 131072
    a("v_add_f32 v36, v36, v37")
    a("v_mov_b32 v37, v36")
    a("v_permlane32_swap_b32 v36, v37")
    a("v_add_f32 v36, v36, v37")
    a("v_cmp_gt_u32 vcc, 32, v1")
    a("v_lshlrev_b32 v40, 2, v1")
    a("s_lshl_b32 s26, s20, 12")
    a("s_add_u32 s26, s26, %d" % SC)
    a("v_add_u32 v41, s26, v40")
    a("v_cndmask_b32 v42, v36, v%d, vcc" % SX)
    a("v_cndmask_b32 v43, v%d, v%d, vcc" % (CSR[1], CSR[0]))
    a("ds_write_b32 v41, v42")
    a("ds_write_b32 v41, v43 offset:256")
    a("ds_write_b32 v41, v%d offset:512" % CSR[2])
    a("v_and_b32 v40, 31, v1")
    a("v_lshlrev_b32 v40, 2, v40")
    a("s_xor_b32 s29, s26, 8192")
    a("v_add_u32 v44, s29, v40")
    a("s_xor_b32 s29, s26, 4096")
    a("v_add_u32 v45, s29, v40")
    a.wait_lg0()
    a("s_barrier")
    a("ds_read_b32 v%d, v44" % UT)
    a("ds_read_b32 v%d, v44 offset:128" % (UT + 1))
    a("ds_read_b32 v%d, v45 offset:256" % (UT + 2))
    a("ds_read_b32 v%d, v45 offset:384" % (UT + 3))
    a("ds_read_b32 v%d, v45 offset:512" % (UT + 4))
    a("s_lshl_b32 s33, s22, 1")
    a("s_add_u32 s33, s33, s31")
    a("s_lshl_b32 s23, s21, 1")
    a("s_add_u32 s23, s23, s30")
    a("s_lshl_b32 s29, s33, 17")
    a("s_lshl_b32 s32, s23, 10")
    a("s_add_u32 s29, s29, s32")
    a("v_lshlrev_b32 v2, 4, v1")
    a("v_add_u32 v2, s29, v2")
    a("v_bfe_u32 v3, v1, 4, 1")
    a("v_lshlrev_b32 v3, 16, v3")
    a("v_lshrrev_b32 v4, 5, v1")
    a("v_lshl_add_u32 v3, v4, 8, v3")
    a("v_and_b32 v5, 15, v1")
    a("v_lshl_add_u32 v3, v5, 4, v3")
    a("v_add_u32 v3, s29, v3")
    a("v_lshlrev_b32 v4, 4, v4")
    a("v_add_u32 v4, s26, v4")
    a("s_mov_b32 s34, %d" % VF)
    a("s_mov_b32 s35, %d" % KF)
    a("s_mov_b32 s36, %d" % (KF + 65536))
    a("s_mov_b32 s37, %d" % (QF + 65536))
    a("s_waitcnt lgkmcnt(3)")
    MU, R = 38, 39
    a("v_add_f32 v%d, v%d, v%d" % (UT, UT, SX))
    a("v_add_f32 v36, v36, v%d" % (UT + 1))
    a("v_mul_f32 v%d, 0xbb000000, v%d" % (MU, UT))
    a("v_mul_f32 v36, 0x3b000000, v36")
    a("v_fma_f32 v36, -v%d, v%d, v36" % (MU, MU))
    a("v_max_f32 v36, 0, v36")
    a("v_add_f32 v36, %s, v36" % f32hex(1e-5))
    a("v_rsq_f32 v%d, v36" % R)
    a("v_cndmask_b32 v%d, 0, v%d, vcc" % (MU, MU))
    MX, CX, T = 48, [56, 60, 64], 68
    split3(a, MU, T, T + 1, T + 2)
    a("ds_write_b32 v41, v%d offset:1024" % R)
    pack2(a, MX, T, T + 1)
    pack2(a, MX + 1, T, T + 2)
    a("v_mov_b32 v%d, v%d" % (MX + 2, MX))
    a("v_mov_b32 v%d, 0" % (MX + 3))
    RR = 152
    for g in range(4):
        a("ds_read_b128 %s, v4 offset:%d" % (vr(RR + 4 * g, 4), 1024 + g * 32))
    a("s_waitcnt lgkmcnt(5)")
    for b in (2, 1, 0):
        a("v_add_f32 v%d, v%d, v%d" % (UT + 2 + b, UT + 2 + b, CSR[b]))
        split3(a, UT + 2 + b, T, T + 1, T + 2)
        pack2(a, CX[b], T, T)
        pack2(a, CX[b] + 1, T + 1, T)
        pack2(a, CX[b] + 2, T + 2, T + 1)
        a("v_mov_b32 v%d, 0" % (CX[b] + 3))
        if b == 2:
            a("v_mfma_f32_32x32x16_bf16 %s, %s, %s, %s" % (vr(ACC[2], 16), vr(MX, 4), vr(CX[2], 4), vr(ACC[2], 16)))
        else:
            a("v_mfma_f32_32x32x16_bf16 %s, %s, %s, %s" % (vr(ACC[b], 16), vr(CX[b], 4), vr(MX, 4), vr(ACC[b], 16)))
    a("s_waitcnt lgkmcnt(0)")
    a.lg = []
    P = 168
    for r in range(16):
        a("v_mul_f32 v%d, v%d, v%d" % (ACC[2] + r, ACC[2] + r, RR + r))
    for r in range(8):
        a("v_cvt_pk_bf16_f32 v%d, v%d, v%d" % (P + r, ACC[2] + 2 * r, ACC[2] + 2 * r + 1))
    a("buffer_store_dwordx4 %s, v3, s[16:19], s34 offen" % vr(P, 4))
    a("buffer_store_dwordx4 %s, v3, s[16:19], s34 offen offset:512" % vr(P + 4, 4))
    for r in range(16):
        a("v_mul_f32 v%d, v%d, v%d" % (ACC[1] + r, R, ACC[1] + r))
    for r in range(8):
        a("v_cvt_pk_bf16_f32 v%d, v%d, v%d" % (P + 8 + r, ACC[1] + 2 * r, ACC[1] + 2 * r + 1))
    a("buffer_store_dwordx4 %s, v2, s[16:19], s35 offen" % vr(P + 8, 4))
    a("buffer_store_dwordx4 %s, v2, s[16:19], s36 offen" % vr(P + 12, 4))
    a("v_mul_f32 v37, %s, v%d" % (f32hex(0.25 * LOG2E), R))
    for r in range(16):
        a("v_mul_f32 v%d, v37, v%d" % (ACC[0] + r, ACC[0] + r))
    for r in range(8):
        a("v_cvt_pk_bf16_f32 v%d, v%d, v%d" % (P + 16 + r, ACC[0] + 2 * r, ACC[0] + 2 * r + 1))
    a("buffer_store_dwordx4 %s, v2, s[16:19], 0 offen" % vr(P + 16, 4))
    a("buffer_store_dwordx4 %s, v2, s[16:19], s37 offen" % vr(P + 20, 4))
    a("v_mov_b32 v40, 0")
    a("v_mov_b32 v41, 0")
    for r in range(4):
        a("v_dot2c_f32_bf16 v40, v%d, v%d" % (P + 8 + r, P + 8 + r))
        a("v_dot2c_f32_bf16 v41, v%d, v%d" % (P + 12 + r, P + 12 + r))
    a("v_permlane32_swap_b32 v40, v41")
    a("v_add_f32 v40, v40, v41")
    for sh in (1, 2, 4, 8):
        a("v_max_f32_dpp v40, v40, v40 row_shr:%d row_mask:0xf bank_mask:0xf bound_ctrl:0" % sh)
    a("v_max_f32_dpp v40, v40, v40 row_bcast:15 row_mask:0xa bank_mask:0xf")
    a("v_lshrrev_b32 v41, 5, v1")
    a("v_lshlrev_b32 v41, 8, v41")
    a("s_lshl_b32 s29, s33, 9")
    a("s_lshl_b32 s32, s23, 2")
    a("s_add_u32 s29, s29, s32")
    a("s_add_u32 s29, s29, %d" % KN)
    a("s_mov_b32 s38, 0x80000000")
    a("s_mov_b32 s39, 0x80000000")
    a("s_mov_b64 exec, s[38:39]")
    a("buffer_store_dword v40, v41, s[16:19], s29 offen")
    stamp(a, 4)
    stamp_store(a, 0, 5)
    a.label("L_k1_end")
    a("s_endpgm")
    return kernel_text("k1_qkv_kernel", a, 192, 102)
```

```python
from common import *

def k2(NW=int(os.environ.get("K2NW", 16)), PRIO=int(os.environ.get("K2PRIO", 1))):
    a = Asm()
    KSP = NW // 8
    NT = 64 // KSP
    NIT = NT // 8
    KL, VL, PL = 0, 65536, 131072
    PW = 32768 // NW
    a("s_cmp_ge_u32 s2, 256")
    a("s_cbranch_scc1 L_k2_end")
    stamp(a, 0)
    a("s_load_dwordx2 s[16:17], s[0:1], 72")
    a("s_load_dwordx2 s[40:41], s[0:1], 16")
    a("s_load_dwordx4 s[44:47], s[0:1], 32")
    a("s_load_dwordx2 s[42:43], s[0:1], 48")
    a("v_and_b32 v1, 63, v0")
    a("v_lshrrev_b32 v2, 6, v0")
    a("s_and_b32 s21, s2, 31")
    a("s_lshr_b32 s22, s2, 5")
    a("v_readfirstlane_b32 s20, v2")
    a("v_lshlrev_b32 v2, 4, v1")
    a("s_lshl_b32 s23, s21, 16")
    a("s_and_b32 s64, s20, 7")
    a("s_lshr_b32 s65, s20, 3")
    a("s_lshl_b32 s66, s65, 15")
    a("s_lshl_b32 s24, s64, 10")
    a("s_add_u32 s24, s24, s66")
    a("s_add_u32 s25, s23, s24")
    a("s_lshl_b32 s26, s22, 3")
    a("s_add_u32 s26, s26, s64")
    a("s_lshl_b32 s27, s26, 10")
    a("s_add_u32 s27, s27, s23")
    a("s_mov_b32 s18, 0x%x" % WS_BYTES)
    a("s_mov_b32 s19, 0x00020000")
    a("v_add_u32 v3, s25, v2")
    a("s_lshl_b32 s28, s21, 8")
    a("s_add_u32 s28, s28, %d" % KN)
    a("v_lshlrev_b32 v4, 2, v1")
    a("s_waitcnt lgkmcnt(0)")
    Q, NM, S, P, O, KFR, VFR = 8, 16, [32, 48], 64, 72, [88, 92], [96, 104]
    def kv_dma(c):
        a("s_add_u32 m0, s24, %d" % (KL + c * 8192))
        a("s_mov_b32 s29, %d" % (KF + c * 8192))
        a("buffer_load_dwordx4 v3, s[16:19], s29 offen lds", tag=("kv", c))
        a("s_add_u32 m0, s24, %d" % (VL + c * 8192))
        a("s_mov_b32 s29, %d" % (VF + c * 8192))
        a("buffer_load_dwordx4 v3, s[16:19], s29 offen lds", tag=("kv", c))
    a("buffer_load_dwordx4 %s, v2, s[16:19], s27 offen" % vr(Q, 4), tag="q")
    a("buffer_load_dword v5, v4, s[16:19], s28 offen", tag="q")
    kv_dma(0)
    a("v_mov_b32 v6, 0x3f803f80")
    for b in range(2):
        for r in range(8):
            a("v_mov_b32 v%d, v6" % (VFR[b] + r))
    a("s_mov_b32 s60, 0x0000ffff")
    a("s_mov_b32 s61, 0x0000ffff")
    a("v_lshrrev_b32 v6, 5, v1")
    a("v_lshlrev_b32 v6, 8, v6")
    a("v_and_b32 v7, 15, v1")
    a("v_lshl_add_u32 v6, v7, 4, v6")
    a("v_add_u32 v6, %d, v6" % VL)
    a("v_add_u32 v6, s66, v6")
    a("v_add_u32 v7, s66, v2")
    for r in range(16):
        a("v_mov_b32 v%d, 0" % (O + r))
    for r in range(4, 8):
        a("v_mov_b32 v%d, 0" % (P + r))
    a("s_lshl_b32 s30, s64, 12")
    a("s_add_u32 s30, s30, %d" % PL)
    a("v_lshrrev_b32 v116, 3, v1")
    a("v_and_b32 v117, 7, v1")
    a("v_lshlrev_b32 v117, 4, v117")
    a("v_bfe_u32 v112, v1, 2, 2")
    a("v_lshrrev_b32 v113, 5, v1")
    a("v_lshl_add_u32 v112, v113, 2, v112")
    a("v_lshlrev_b32 v112, 7, v112")
    a("v_and_b32 v113, 3, v1")
    a("v_lshl_add_u32 v112, v113, 3, v112")
    a("v_add_u32 v112, s30, v112")
    a("v_bfe_u32 v113, v1, 4, 1")
    a("s_sub_u32 s38, s2, 72")
    a("s_cmp_ge_u32 s2, 184")
    a("s_cselect_b32 s38, s38, s2")
    a("s_cmp_ge_u32 s2, 112")
    a("s_cbranch_scc1 L_k2_prep_plain")
    a("s_lshr_b32 s31, s2, 2")
    a("s_and_b32 s32, s2, 3")
    a("s_lshl_b32 s32, s32, 3")
    a("s_add_u32 s32, s32, s64")
    a("s_mul_i32 s33, s32, %d" % (16 * 3584))
    a("s_lshl_b32 s34, s31, 7")
    a("s_add_u32 s68, s33, s34")
    a("s_add_u32 s69, s68, %d" % (8 * 3584))
    a("s_mov_b32 s70, s68")
    a("s_mov_b32 s71, s69")
    a("v_mul_u32_u24 v116, 3584, v116")
    a("v_add_u32 v116, v116, v117")
    a("s_mov_b32 s48, s44")
    a("s_mov_b32 s49, s45")
    a("s_mov_b32 s50, %d" % (512 * 3584))
    a("s_mov_b32 s51, 0x00020000")
    a("s_mov_b32 s52, s46")
    a("s_mov_b32 s53, s47")
    a("s_mov_b32 s54, %d" % (512 * 3584))
    a("s_mov_b32 s55, 0x00020000")
    a("v_lshl_add_u32 v112, v113, 11, v112")
    a("v_add_u32 v113, 32, v112")
    a("v_add_u32 v114, 64, v112")
    a("v_add_u32 v115, 96, v112")
    a("s_lshl_b32 s33, s31, 17")
    a("s_lshl_b32 s34, s32, 10")
    a("s_add_u32 s33, s33, s34")
    a("s_add_u32 s56, s33, %d" % WGUF)
    a("s_add_u32 s57, s56, 32768")
    a("s_add_u32 s58, s56, 65536")
    a("s_add_u32 s59, s56, 98304")
    a("s_branch L_k2_prep_done")
    a.label("L_k2_prep_plain")
    a("s_cmp_ge_u32 s38, 128")
    a("s_cselect_b32 s48, s42, s40")
    a("s_cselect_b32 s49, s43, s41")
    a("s_mov_b32 s50, %d" % (512 * 1024))
    a("s_cselect_b32 s50, %d, s50" % (1792 * 1024))
    a("s_mov_b32 s51, 0x00020000")
    a("s_mov_b32 s52, s48")
    a("s_mov_b32 s53, s49")
    a("s_mov_b32 s54, s50")
    a("s_mov_b32 s55, 0x00020000")
    a("s_mov_b32 s31, 112")
    a("s_cselect_b32 s31, 128, s31")
    a("s_mov_b32 s35, %d" % WDF)
    a("s_mov_b32 s36, %d" % WOF)
    a("s_cselect_b32 s35, s35, s36")
    a("s_cselect_b32 s36, 112, 32")
    a("s_sub_u32 s31, s38, s31")
    a("s_and_b32 s32, s31, 7")
    a("s_lshr_b32 s31, s31, 3")
    a("s_lshl_b32 s31, s31, 4")
    a("s_lshl_b32 s33, s64, 1")
    a("s_add_u32 s31, s31, s33")
    a("s_lshl_b32 s33, s31, 14")
    a("s_lshl_b32 s34, s32, 7")
    a("s_add_u32 s68, s33, s34")
    a("s_add_u32 s69, s68, 8192")
    a("s_add_u32 s70, s68, 16384")
    a("s_add_u32 s71, s68, 24576")
    a("v_lshl_add_u32 v116, v116, 10, v117")
    a("v_lshl_add_u32 v112, v113, 5, v112")
    a("v_add_u32 v113, 64, v112")
    a("v_add_u32 v114, 2048, v112")
    a("v_add_u32 v115, 2112, v112")
    a("s_lshl_b32 s32, s32, 1")
    a("s_mul_i32 s32, s32, s36")
    a("s_add_u32 s32, s32, s31")
    a("s_lshl_b32 s32, s32, 10")
    a("s_add_u32 s56, s35, s32")
    a("s_lshl_b32 s36, s36, 10")
    a("s_add_u32 s57, s56, s36")
    a("s_add_u32 s58, s56, 1024")
    a("s_add_u32 s59, s57, 1024")
    a.label("L_k2_prep_done")
    a.wait_vm("q")
    a("v_mov_b32 v12, 0")
    for r in range(4):
        a("v_dot2c_f32_bf16 v12, v%d, v%d" % (Q + r, Q + r))
    for sh in (1, 2, 4, 8):
        a("v_max_f32_dpp v5, v5, v5 row_shr:%d row_mask:0xf bank_mask:0xf bound_ctrl:0" % sh)
    a("v_max_f32_dpp v5, v5, v5 row_bcast:15 row_mask:0xa bank_mask:0xf")
    a("v_max_f32_dpp v5, v5, v5 row_bcast:31 row_mask:0xc bank_mask:0xf")
    a("v_mov_b32 v13, v12")
    a("v_permlane32_swap_b32 v12, v13")
    a("v_add_f32 v12, v12, v13")
    a("v_readlane_b32 s62, v5, 63")
    a("v_mul_f32 v12, s62, v12")
    a("v_sqrt_f32 v12, v12")
    a("v_mul_f32 v%d, %s, v12" % (NM, f32hex(-1.01)))
    for r in range(1, 16):
        a("v_mov_b32 v%d, v%d" % (NM + r, NM))
    stamp(a, 1)
    a.wait_vm(("kv", 0))
    a("s_barrier")
    stamp(a, 2)
    if STAMP: a.wait_lg0()

    def k_read(t, off):
        a("ds_read_b128 %s, v7 offset:%d" % (vr(KFR[t % 2], 4), KL + off * 1024))
    def v_read(t, off):
        a("s_mov_b64 exec, s[60:61]")
        a("ds_read_b128 %s, v6 offset:%d" % (vr(VFR[t % 2], 4), off * 1024))
        a("ds_read_b128 %s, v6 offset:%d" % (vr(VFR[t % 2] + 4, 4), off * 1024 + 512))
        a("s_mov_b64 exec, -1")
    def qk(t):
        a("v_mfma_f32_32x32x16_bf16 %s, %s, %s, %s" % (vr(S[t % 2], 16), vr(KFR[t % 2], 4), vr(Q, 4), vr(NM, 16)))
    def pv(t, mm):
        a("v_mfma_f32_32x32x16_bf16 %s, %s, %s, %s" % (vr(O, 16), vr(VFR[t % 2] + 4 * mm, 4), vr(P + 4 * mm, 4), vr(O, 16)))
    k_read(0, 0)
    k_read(1, 1)
    v_read(0, 0)
    a("s_mov_b32 s63, 1")
    if PRIO: a("s_setprio 3")
    a("s_waitcnt lgkmcnt(3)")
    qk(0)
    for c in range(1, NIT):
        kv_dma(c)
    a("s_nop 3")
    def prep_ld(i):
        a("s_add_u32 m0, s30, %d" % (i * 1024))
        a("s_nop 0")
        a("buffer_load_dwordx4 v116, s[%d:%d], s%d offen lds" % ((48, 51, 68 + i) if i < 2 else (52, 55, 68 + i)))
    def body(peel):
        for t in range(8):
            s = S[t % 2]
            def e(i): a("v_exp_f32 v%d, v%d" % (s + i, s + i))
            def c(i): a("v_cvt_pk_bf16_f32 v%d, v%d, v%d" % (P + i, s + 2 * i, s + 2 * i + 1))
            a("s_waitcnt lgkmcnt(0)")
            qk(t + 1)
            if t == 6:
                if peel:
                    stamp(a, 5)
                    a.wait_vm0()
                    stamp(a, 6)
                    a("s_barrier")
                    if PRIO: a("s_setprio 3")
                    stamp(a, 7)
                else:
                    a("s_branch L_k2_sync")
                    a.label("L_k2_sync_back")
            k_read(t + 2, t + 2)
            e(0); e(1); e(2); c(0); e(3)
            pv(t - 1, 1)
            v_read(t + 1, t + 1)
            e(4); c(1); e(5); e(6); c(2); e(7); e(8); c(3); e(9); e(10)
            pv(t, 0)
            if peel and PRIO and t in (2, 4):
                a("s_setprio %d" % (2 if t == 2 else 1))
            if peel and t == 7:
                if KSP == 2:
                    a("s_cmp_eq_u32 s65, 0")
                    a("s_cbranch_scc1 L_k2_noprepld")
                for i in range(4):
                    prep_ld(i)
                a.label("L_k2_noprepld")
            c(4); e(11); e(12); c(5); e(13); e(14); e(15); c(6)
            if t == 7:
                a("v_add_u32 v7, 8192, v7")
                a("v_add_u32 v6, 8192, v6")
                if not peel:
                    a("s_add_u32 s63, s63, 1")
            c(7)
    body(True)
    stamp(a, 9)
    a.raw(".p2align 6")
    a.label("L_k2_loop")
    body(False)
    a("s_cmp_lt_u32 s63, %d" % NIT)
    a("s_cbranch_scc1 L_k2_loop")
    a("s_nop 1")
    pv(7, 1)
    stamp(a, 3)
    L = O + 8
    if KSP == 2:
        a("s_waitcnt lgkmcnt(0)")
        a("v_add_u32 v12, s30, v2")
        a("s_cmp_eq_u32 s65, 0")
        a("s_cbranch_scc1 L_k2_low")
        a("s_nop 15")
        for q in range(3):
            a("ds_write_b128 v12, %s offset:%d" % (vr(O + 4 * q, 4), q * 1024))
        a("s_waitcnt lgkmcnt(0)")
        a("s_barrier")
        a("s_branch L_k2_hi_end")
        a.label("L_k2_low")
        a("s_barrier")
        for q in range(3):
            a("ds_read_b128 %s, v12 offset:%d" % (vr(S[0] + 4 * q, 4), q * 1024))
        a("s_waitcnt lgkmcnt(0)")
        for r in range(9):
            a("v_add_f32 v%d, v%d, v%d" % (O + r, O + r, S[0] + r))
    else:
        a("s_nop 15")
    a("v_cmp_nle_f32 vcc, %s, v%d" % (f32hex(2.0 ** -64), L))
    a("s_nop 4")
    a("s_cbranch_vccnz L_k2_fallback")
    a.label("L_k2_fin")
    a("v_rcp_f32 v12, v%d" % L)
    for r in range(8):
        a("v_mul_f32 v%d, v%d, v12" % (O + r, O + r))
    for r in range(4):
        a("v_cvt_pk_bf16_f32 v%d, v%d, v%d" % (P + r, O + 2 * r, O + 2 * r + 1))
    a("s_lshl_b32 s29, s26, 15")
    a("s_lshl_b32 s30, s21, 10")
    a("s_add_u32 s29, s29, s30")
    a("s_add_u32 s29, s29, %d" % OF)
    a("buffer_store_dwordx4 %s, v2, s[16:19], s29 offen" % vr(P, 4))
    a.label("L_k2_hi_end")
    stamp(a, 4)
    if STAMP:
        a("s_cmp_ge_u32 s20, 8")
        a("s_cselect_b32 s20, 7, s20")
    stamp_store(a, 1, 10)
    a.label("L_k2_end")
    a("s_endpgm")
    a.label("L_k2_sync")
    if PRIO:
        lv = {NIT - 1: 0, NIT - 2: 1, NIT - 3 if NIT == 4 else NIT - 4: 2}
        for it, p in lv.items():
            a("s_cmp_eq_u32 s63, %d" % it)
            a("s_cbranch_scc0 L_k2_pr%d" % it)
            if p == 0 and KSP == 2:
                a("s_cmp_eq_u32 s65, 0")
                a("s_cbranch_scc0 L_k2_pr%d" % it)
            a("s_setprio %d" % p)
            a.label("L_k2_pr%d" % it)
    a("s_cmp_eq_u32 s63, %d" % (NIT // 2))
    a("s_cbranch_scc0 L_k2_sync_back")
    a.label("L_k2_sync1")
    stamp(a, 8)
    if KSP == 2:
        a("s_cmp_eq_u32 s65, 0")
        a("s_cbranch_scc1 L_k2_sync_back")
    a("s_waitcnt vmcnt(0)")
    T = 120
    for half in range(2):
        for q in range(2):
            for t in range(2):
                a("ds_read_b64_tr_b16 %s, v%d offset:%d" % (vr(T + 4 * q + 2 * t, 2), 112 + 2 * half + q, t * 1024))
        a("s_waitcnt lgkmcnt(0)")
        for q in range(2):
            a("buffer_store_dwordx4 %s, v2, s[16:19], s%d offen sc1" % (vr(T + 4 * q, 4), 56 + 2 * half + q))
        a("s_nop 1")
    a("s_branch L_k2_sync_back")
    a.label("L_k2_fallback")
    a("v_mov_b32 v7, v2")
    a("v_mov_b32 v12, 0xff800000")
    a("s_mov_b32 s63, 0")
    a.label("L_k2_fb_loop")
    a("ds_read_b128 %s, v7" % vr(KFR[0], 4))
    a("v_add_u32 v7, 1024, v7")
    a("s_waitcnt lgkmcnt(0)")
    a("v_mfma_f32_32x32x16_bf16 %s, %s, %s, 0" % (vr(S[0], 16), vr(KFR[0], 4), vr(Q, 4)))
    for r in range(0, 16, 2):
        a("v_max3_f32 v12, v12, v%d, v%d" % (S[0] + r, S[0] + r + 1))
    a("s_add_u32 s63, s63, 1")
    a("s_cmp_lt_u32 s63, 64")
    a("s_cbranch_scc1 L_k2_fb_loop")
    a("v_mov_b32 v13, v12")
    a("v_permlane32_swap_b32 v12, v13")
    a("v_max_f32 v12, v12, v13")
    a("v_sub_f32 v12, 0, v12")
    for r in range(16):
        a("v_mov_b32 v%d, v12" % (NM + r))
    for r in range(16):
        a("v_mov_b32 v%d, 0" % (O + r))
    a("v_mov_b32 v7, v2")
    a("v_subrev_u32 v6, %d, v6" % (NT * 1024))
    a("s_mov_b32 s63, 0")
    a.label("L_k2_fb2_loop")
    a("ds_read_b128 %s, v7" % vr(KFR[0], 4))
    v_read(0, 0)
    a("v_add_u32 v7, 1024, v7")
    a("v_add_u32 v6, 1024, v6")
    a("s_waitcnt lgkmcnt(0)")
    qk(0)
    for r in range(16):
        a("v_exp_f32 v%d, v%d" % (S[0] + r, S[0] + r))
    for r in range(8):
        a("v_cvt_pk_bf16_f32 v%d, v%d, v%d" % (P + r, S[0] + 2 * r, S[0] + 2 * r + 1))
    pv(0, 0)
    pv(0, 1)
    a("s_add_u32 s63, s63, 1")
    a("s_cmp_lt_u32 s63, 64")
    a("s_cbranch_scc1 L_k2_fb2_loop")
    a("s_nop 15")
    a("s_branch L_k2_fin")
    return kernel_text("k2_attn_kernel", a, 128, 102), NW * 64
```

```python
from common import *

def reduce_4waves(a, ACC, areg, T, vaddr_w, vaddr_r, wave_s):
    pass

def k35(which):
    a = Asm()
    nm = "k%d" % which
    KS = 32 if which == 3 else 112
    KW = KS // 4
    BBASE = OF if which == 3 else AF
    ABASE = WOF if which == 3 else WDF
    NWG = 256
    if which == 3:
        a("s_cmp_ge_u32 s2, 284")
        a("s_cbranch_scc1 L_%s_end" % nm)
    else:
        a("s_cmp_ge_u32 s2, 256")
        a("s_cbranch_scc1 L_%s_end" % nm)
    stamp(a, 0)
    a("s_load_dwordx2 s[16:17], s[0:1], 72")
    if which == 3:
        a("s_load_dwordx2 s[8:9], s[0:1], 0")
    else:
        a("s_load_dwordx2 s[8:9], s[0:1], 56")
    a("v_and_b32 v1, 63, v0")
    a("v_lshrrev_b32 v2, 6, v0")
    a("s_mov_b32 s18, 0x%x" % WS_BYTES)
    a("s_mov_b32 s19, 0x00020000")
    a("v_readfirstlane_b32 s20, v2")
    a("v_lshlrev_b32 v2, 4, v1")
    a("s_mov_b32 s10, 0x200000")
    a("s_mov_b32 s11, 0x00020000")
    if which == 3:
        a("s_cmp_ge_u32 s2, 256")
        a("s_cbranch_scc1 L_k3_colsum")
    a("s_and_b32 s21, s2, 7")
    a("s_lshl_b32 s21, s21, 2")
    a("s_lshr_b32 s22, s2, 3")
    a("s_and_b32 s22, s22, 3")
    a("s_add_u32 s21, s21, s22")
    a("s_lshr_b32 s22, s2, 5")
    a("s_mul_i32 s23, s21, %d" % (2 * KS * 1024))
    a("s_mul_i32 s24, s20, %d" % (KW * 1024))
    a("s_add_u32 s23, s23, s24")
    a("s_add_u32 s24, s24, %d" % ABASE)
    a("s_add_u32 s23, s23, %d" % BBASE)
    a("s_mul_i32 s25, s22, %d" % (2 * KS * 1024))
    a("s_add_u32 s24, s24, s25")
    a("v_add_u32 v4, s24, v2")
    a("v_add_u32 v5, %d, v4" % (KS * 1024))
    a("v_add_u32 v6, s23, v2")
    a("v_add_u32 v7, %d, v6" % (KS * 1024))
    a("s_waitcnt lgkmcnt(0)")
    WIN = min(KW, 14)
    FB = 16
    def frag(i, j):
        return FB + ((i % WIN) * 4 + j) * 4
    def loads(i):
        if i % 4 == 0 and i > 0:
            a("s_mov_b32 s26, %d" % (i * 1024))
        so = "0" if i < 4 else "s26"
        for j in range(4):
            a("buffer_load_dwordx4 %s, v%d, s[16:19], %s offen offset:%d" % (vr(frag(i, j), 4), 4 + j, so, (i % 4) * 1024), tag=("f", i))
    for i in range(WIN):
        loads(i)
        if i == 1:
            a("s_and_b32 s27, s20, 1")
            a("s_lshr_b32 s28, s20, 1")
            a("s_lshl_b32 s29, s22, 1")
            a("s_add_u32 s27, s27, s29")
            a("s_lshl_b32 s29, s21, 1")
            a("s_add_u32 s28, s28, s29")
    RES = FB + WIN * 16
    if which == 3:
        a("v_and_b32 v8, 31, v1")
        a("v_lshlrev_b32 v8, 10, v8")
        a("v_lshrrev_b32 v9, 5, v1")
        a("v_lshl_add_u32 v8, v9, 3, v8")
        a("s_lshl_b32 s29, s28, 15")
        a("s_lshl_b32 s30, s27, 6")
        a("s_add_u32 s29, s29, s30")
        for g in range(4):
            a("buffer_load_dwordx2 %s, v8, s[8:11], s29 offen offset:%d" % (vr(RES + 2 * g, 2), g * 16), tag="res")
    else:
        a("s_lshl_b32 s29, s28, 15")
        a("s_lshl_b32 s30, s27, 11")
        a("s_add_u32 s29, s29, s30")
        a("s_add_u32 s29, s29, %d" % HF)
        a("buffer_load_dwordx4 %s, v2, s[16:19], s29 offen" % vr(RES, 4), tag="res")
        a("buffer_load_dwordx4 %s, v2, s[16:19], s29 offen offset:1024" % vr(RES + 4, 4), tag="res")
    ACC = [0, 16, 32, 48]
    stamp(a, 1)
    for i in range(KW):
        a.wait_vm(("f", i))
        if i == 0: stamp(a, 2)
        for bt in range(2):
            for an in range(2):
                acc = ar(ACC[an + 2 * bt], 16)
                a("v_mfma_f32_32x32x16_bf16 %s, %s, %s, %s" % (acc, vr(frag(i, an), 4), vr(frag(i, 2 + bt), 4), "0" if i == 0 else acc))
        if i + WIN < KW:
            loads(i + WIN)
    stamp(a, 3)
    a("s_lshl_b32 s29, s20, 12")
    a("v_add_u32 v8, s29, v2")
    a("s_lshl_b32 s29, s20, 14")
    a("v_add_u32 v9, s29, v2")
    for blk in range(4):
        for q in range(4):
            a("ds_write_b128 v8, %s offset:%d" % (ar(ACC[blk] + 4 * q, 4), blk * 16384 + q * 1024))
    a.wait_lg0()
    a("s_barrier")
    R = FB
    for q in range(4):
        for src in range(4):
            a("ds_read_b128 %s, v9 offset:%d" % (vr(R + src * 16 + 4 * q, 4), src * 4096 + q * 1024), tag=("rd", q))
    a.wait_vm("res")
    U = R + 64
    for r in range(8):
        a("v_lshlrev_b32 v%d, 16, v%d" % (U + 2 * r, RES + r))
        a("v_and_b32 v%d, 0xffff0000, v%d" % (U + 2 * r + 1, RES + r))
    for q in range(4):
        a.wait_lg(("rd", q))
        for e in range(4):
            r = 4 * q + e
            a("v_add_f32 v%d, v%d, v%d" % (R + r, R + r, R + 16 + r))
            a("v_add_f32 v%d, v%d, v%d" % (R + 32 + r, R + 32 + r, R + 48 + r))
            a("v_add_f32 v%d, v%d, v%d" % (U + r, U + r, R + r))
            a("v_add_f32 v%d, v%d, v%d" % (U + r, U + r, R + 32 + r))
    Pk = U + 16
    for r in range(8):
        a("v_cvt_pk_bf16_f32 v%d, v%d, v%d" % (Pk + r, U + 2 * r, U + 2 * r + 1))
    if which == 3:
        a("s_lshl_b32 s29, s28, 15")
        a("s_lshl_b32 s30, s27, 11")
        a("s_add_u32 s29, s29, s30")
        a("s_add_u32 s29, s29, %d" % HF)
        a("buffer_store_dwordx4 %s, v2, s[16:19], s29 offen" % vr(Pk, 4))
        a("buffer_store_dwordx4 %s, v2, s[16:19], s29 offen offset:1024" % vr(Pk + 4, 4))
        a("v_mov_b32 v10, 0")
        a("v_mov_b32 v11, 0")
        a("v_mov_b32 v12, 0x3f803f80")
        for r in range(8):
            a("v_dot2c_f32_bf16 v10, v%d, v12" % (Pk + r))
            a("v_dot2c_f32_bf16 v11, v%d, v%d" % (Pk + r, Pk + r))
        a("v_permlane32_swap_b32 v10, v11")
        a("v_add_f32 v10, v10, v11")
        a("v_and_b32 v8, 31, v1")
        a("v_lshlrev_b32 v8, 2, v8")
        a("v_lshrrev_b32 v9, 5, v1")
        a("v_lshl_add_u32 v8, v9, 13, v8")
        a("s_lshl_b32 s29, s27, 14")
        a("s_lshl_b32 s30, s28, 7")
        a("s_add_u32 s29, s29, s30")
        a("s_add_u32 s29, s29, %d" % ST)
        a("buffer_store_dword v10, v8, s[16:19], s29 offen")
        stamp(a, 4)
        stamp_store(a, 2, 5)
        a("s_endpgm")
        a.label("L_k3_colsum")
        a.vm = []
        a("s_sub_u32 s21, s2, 256")
        a("s_lshl_b32 s21, s21, 2")
        a("s_add_u32 s21, s21, s20")
        a("s_lshl_b32 s22, s21, 15")
        a("s_add_u32 s22, s22, %d" % WGUF)
        a("v_add_u32 v4, s22, v2")
        a("v_lshrrev_b32 v8, 4, v1")
        a("v_lshrrev_b32 v9, 2, v1")
        a("v_xor_b32 v8, v8, v9")
        a("v_and_b32 v8, 1, v8")
        a("v_cmp_eq_u32 vcc, 0, v8")
        a("v_mov_b32 v9, 0x3f803f80")
        a("v_cndmask_b32 v8, 0, v9, vcc")
        a("v_mov_b32 v9, v8")
        a("v_mov_b32 v10, v8")
        a("v_mov_b32 v11, v8")
        a("s_waitcnt lgkmcnt(0)")
        for i in range(32):
            if i % 4 == 0:
                a("s_mov_b32 s26, %d" % (i * 1024))
            a("buffer_load_dwordx4 %s, v4, s[16:19], s26 offen offset:%d" % (vr(FB + 4 * i, 4), (i % 4) * 1024), tag=("c", i))
        for i in range(32):
            if i % 4 == 0:
                a.wait_vm(("c", i + 3))
            a("v_mfma_f32_16x16x32_bf16 v[12:15], v[8:11], %s, %s" % (vr(FB + 4 * i, 4), "0" if i == 0 else "v[12:15]"))
        from k4 import split3, pack2
        split3(a, 12, 4, 5, 6)
        pack2(a, 8, 4, 4)
        pack2(a, 9, 5, 4)
        pack2(a, 10, 6, 5)
        a("v_mov_b32 v11, 0")
        a("s_mov_b32 exec_lo, 0")
        a("v_mov_b32 v8, 0")
        a("v_mov_b32 v9, 0")
        a("v_mov_b32 v10, 0")
        a("s_mov_b64 exec, -1")
        a("s_lshl_b32 s22, s21, 10")
        a("s_add_u32 s22, s22, %d" % CS)
        a("buffer_store_dwordx4 v[8:11], v2, s[16:19], s22 offen")
    else:
        a("v_permlane32_swap_b32 v%d, v%d" % (Pk + 0, Pk + 2))
        a("v_permlane32_swap_b32 v%d, v%d" % (Pk + 1, Pk + 3))
        a("v_permlane32_swap_b32 v%d, v%d" % (Pk + 4, Pk + 6))
        a("v_permlane32_swap_b32 v%d, v%d" % (Pk + 5, Pk + 7))
        a("v_and_b32 v8, 31, v1")
        a("v_lshlrev_b32 v8, 10, v8")
        a("v_lshrrev_b32 v9, 5, v1")
        a("v_lshl_add_u32 v8, v9, 4, v8")
        a("s_lshl_b32 s29, s28, 15")
        a("s_lshl_b32 s30, s27, 6")
        a("s_add_u32 s29, s29, s30")
        a("buffer_store_dwordx4 %s, v8, s[8:11], s29 offen" % vr(Pk, 4))
        a("buffer_store_dwordx4 %s, v8, s[8:11], s29 offen offset:32" % vr(Pk + 4, 4))
        stamp(a, 4)
        stamp_store(a, 4, 5)
    a.label("L_%s_end" % nm)
    a("s_endpgm")
    nv = max(RES + 8, Pk + 8, FB + 128 if which == 3 else 0)
    nv = (nv + 3) // 4 * 4
    name = "k3_wo_kernel" if which == 3 else "k5_down_kernel"
    return kernel_text(name, a, nv, 102, accum=nv, nagpr=64)
```

```python
from common import *

def split3(a, src, hi, mid, lo):
    a("v_and_b32 v%d, 0xffff0000, v%d" % (hi, src))
    a("v_sub_f32 v%d, v%d, v%d" % (lo, src, hi))
    a("v_and_b32 v%d, 0xffff0000, v%d" % (mid, lo))
    a("v_sub_f32 v%d, v%d, v%d" % (lo, lo, mid))
    a("v_and_b32 v%d, 0xffff0000, v%d" % (lo, lo))
def pack2(a, dst, e_lo, e_hi):
    a("v_lshrrev_b32 v%d, 16, v%d" % (dst, e_lo))
    a("v_or_b32 v%d, v%d, v%d" % (dst, dst, e_hi))

def k4(NA=int(os.environ.get("K4NA", 4)), PD=int(os.environ.get("K4PD", 2)), ROT=int(os.environ.get("K4ROT", 0))):
    a = Asm()
    NB = 7 - NA
    a("s_cmp_ge_u32 s2, 256")
    a("s_cbranch_scc1 L_k4_end")
    stamp(a, 0)
    a("s_load_dwordx2 s[16:17], s[0:1], 72")
    a("v_and_b32 v1, 63, v0")
    a("v_lshrrev_b32 v2, 6, v0")
    a("s_mov_b32 s18, 0x%x" % WS_BYTES)
    a("s_mov_b32 s19, 0x00020000")
    a("v_readfirstlane_b32 s20, v2")
    a("v_lshlrev_b32 v2, 4, v1")
    a("s_lshr_b32 s33, s2, 3")
    a("s_and_b32 s21, s2, 4")
    a("s_lshl_b32 s21, s21, 1")
    a("s_and_b32 s34, s33, 7")
    a("s_add_u32 s21, s21, s34")
    a("s_and_b32 s22, s2, 3")
    a("s_lshl_b32 s22, s22, 2")
    a("s_lshr_b32 s35, s33, 3")
    a("s_add_u32 s22, s22, s35")
    a("s_lshl_b32 s35, s35, 1")
    a("s_add_u32 s34, s34, s35")
    a("s_and_b32 s34, s34, 7")
    a("s_lshl_b32 s34, s34, 12")
    if ROT == 0: a("s_mov_b32 s34, 0")
    if ROT == 1: a("s_and_b32 s34, s34, 4096")
    a("s_lshl_b32 s23, s21, 2")
    a("s_add_u32 s23, s23, s20")
    a("s_lshl_b32 s24, s23, 15")
    a("s_add_u32 s24, s24, %d" % HF)
    a("v_add_u32 v3, s24, v2")
    a("s_mul_i32 s25, s22, %d" % (7 * 32768))
    a("s_lshl_b32 s26, s20, 10")
    a("s_add_u32 s25, s25, %d" % WGUF)
    a("v_add_u32 v4, s25, v2")
    a("v_add_u32 v5, s26, v4")
    for c in range(8):
        a("s_add_u32 s%d, s34, %d" % (40 + c, c * 4096))
        a("s_and_b32 s%d, s%d, 0x7fff" % (40 + c, 40 + c))
    a("s_waitcnt lgkmcnt(0)")
    stamp(a, 9)
    HB = 8
    ACC = 136
    ACC = 16
    WB = 128
    NWB = 8
    E = 160
    PKR = 168
    STR = 176
    BX = 192
    MU, RS, C1, KK = 196, 197, 198, 199
    T0 = 200
    SLOTA = NA * 4096
    EXT = 0
    RING = 8192
    SLOT = max(SLOTA, 16384)
    NSLOT = (163840 - RING) // SLOT
    chunks = [("A", c) for c in range(8)] + [("B", b, hh) for b in range(NA, 7) for hh in range(2)]
    def chunk_vmem(j):
        ops = []
        ch = chunks[j]
        base = RING + (j % NSLOT) * SLOT
        if ch[0] == "A":
            c = ch[1]
            for i in range(max(4, NA)):
                if i < 4:
                    def f(i=i, c=c):
                        a("buffer_load_dwordx4 %s, v3, s[16:19], s%d offen offset:%d" % (ar((4 * c + i) * 4, 4), 40 + c, i * 1024), tag=("c", j))
                    ops.append(f)
                if i < NA:
                    def f(b=i, c=c):
                        a("s_add_u32 m0, s26, %d" % (base + b * 4096))
                        a("s_add_u32 s27, s%d, %d" % (40 + c, b * 32768))
                        a("buffer_load_dwordx4 v5, s[16:19], s27 offen lds", tag=("c", j))
                    ops.append(f)
        else:
            b, hh = ch[1], ch[2]
            for q in range(4):
                def f(q=q, b=b, hh=hh):
                    a("s_add_u32 m0, s26, %d" % (base + q * 4096))
                    a("s_add_u32 s27, s%d, %d" % (40 + 4 * hh + q, b * 32768))
                    a("buffer_load_dwordx4 v5, s[16:19], s27 offen lds", tag=("c", j))
                ops.append(f)
        return ops
    for f in chunk_vmem(0): f()
    stamp(a, 10)
    a("v_and_b32 v6, 31, v1")
    a("v_lshlrev_b32 v6, 2, v6")
    a("v_lshrrev_b32 v7, 5, v1")
    a("v_lshl_add_u32 v6, v7, 13, v6")
    a("s_lshl_b32 s29, s23, 7")
    a("s_add_u32 s29, s29, %d" % ST)
    a("v_add_u32 v6, s29, v6")
    for j in range(1, PD):
        for f in chunk_vmem(j): f()
    a("v_mov_b32 v8, v2")
    a("v_add_u32 v9, 0x10000, v2")
    a("v_add_u32 v10, 0x20000, v2")
    def lds_addr(off):
        return "v%d" % (8 + off // 65536), off % 65536
    steps = []
    for j, ch in enumerate(chunks):
        base = RING + (j % NSLOT) * SLOT
        if ch[0] == "A":
            for kk in range(4):
                for b in range(NA):
                    steps.append((j, b, 4 * ch[1] + kk, base + b * 4096 + kk * 1024))
            if ch[1] == 7:
                for b in range(NA):
                    steps.append((j, b, 32, EXT + b * 1024))
        else:
            b, hh = ch[1], ch[2]
            for kk in range(16):
                steps.append((j, b, 16 * hh + kk, base + kk * 1024))
            if hh == 1:
                steps.append((j, b, 32, EXT + b * 1024))
    LA = NWB - 2
    def rd(i):
        j, b, n, off = steps[i]
        r, o = lds_addr(off)
        a("ds_read_b128 %s, %s offset:%d" % (vr(WB + (i % NWB) * 4, 4), r, o), tag=("r", i))
    side = []
    valu = []
    def stats_code():
        L = []
        for k in (8, 4, 2, 1):
            for i in range(k):
                L.append("v_add_f32 v%d, v%d, v%d" % (STR + i, STR + i, STR + i + k))
        L.append("v_mov_b32 v%d, v%d" % (STR + 1, STR))
        L.append("v_permlane32_swap_b32 v%d, v%d" % (STR, STR + 1))
        L.append("v_mul_f32 v%d, 0xbb000000, v%d" % (MU, STR))
        L.append("v_mul_f32 v%d, 0x3b000000, v%d" % (STR + 1, STR + 1))
        L.append("v_fma_f32 v%d, -v%d, v%d, v%d" % (STR + 1, MU, MU, STR + 1))
        L.append("v_max_f32 v%d, 0, v%d" % (STR + 1, STR + 1))
        L.append("v_add_f32 v%d, %s, v%d" % (STR + 1, f32hex(1e-5), STR + 1))
        L.append("v_rsq_f32 v%d, v%d" % (RS, STR + 1))
        L.append("v_sqrt_f32 v%d, v%d" % (KK, STR + 1))
        L.append("v_mul_f32 v%d, %s, v%d" % (C1, f32hex(-LOG2E), RS))
        L.append("v_mul_f32 v%d, %s, v%d" % (KK, f32hex(-LOG2E), KK))
        t = Asm()
        split3(t, MU, T0, T0 + 1, T0 + 2)
        pack2(t, BX, T0, T0 + 1)
        pack2(t, BX + 1, T0, T0 + 2)
        pack2(t, BX + 2, T0, T0 + 1)
        L += [x.text for x in t.items]
        L.append("v_mov_b32 v%d, 0" % (BX + 3))
        return L
    def epi_code(b):
        G, U = ACC + 16 * b, ACC + 16 * b + 8
        L = []
        for r in range(8):
            L.append("v_mul_f32 v%d, v%d, v%d" % (G + r, C1, G + r))
        for r in range(8):
            L.append("v_exp_f32 v%d, v%d" % (E + r, G + r))
            L.append("v_mul_f32 v%d, v%d, v%d" % (U + r, G + r, U + r))
        for r in range(8):
            L.append("v_fma_f32 v%d, v%d, v%d, v%d" % (E + r, E + r, KK, KK))
        for r in range(8):
            L.append("v_rcp_f32 v%d, v%d" % (E + r, E + r))
            if r > 0:
                L.append("v_mul_f32 v%d, v%d, v%d" % (U + r - 1, U + r - 1, E + r - 1))
        L.append("v_mul_f32 v%d, v%d, v%d" % (U + 7, U + 7, E + 7))
        PK = PKR + (b % 2) * 4
        for r in range(4):
            L.append("v_cvt_pk_bf16_f32 v%d, v%d, v%d" % (PK + r, U + 2 * r, U + 2 * r + 1))
        L.append("buffer_store_dwordx4 %s, v2, s[16:19], %s offen offset:%d" % (vr(PK, 4), "s30" if b < 4 else "s31", (b % 4) * 1024))
        return L
    def cost(s):
        return 8 if s.split()[0] in TRANS else 4
    a("s_mul_i32 s30, s23, %d" % (112 * 1024))
    a("s_mul_i32 s31, s22, %d" % (7 * 1024))
    a("s_add_u32 s30, s30, s31")
    a("s_add_u32 s30, s30, %d" % AF)
    a("s_add_u32 s32, s31, %d" % CS)
    a("s_add_u32 s31, s30, 4096")
    stamp(a, 1)
    a.wait_vm(("c", 0))
    a("s_barrier")
    stamp(a, 2)
    if STAMP: a.wait_lg0()
    for i in range(LA):
        rd(i)
    first = set()
    done_blocks = []
    last_step_of_block = {}
    for i, st in enumerate(steps):
        last_step_of_block[st[1]] = i
    nsteps_chunk = {}
    for st in steps:
        nsteps_chunk[st[0]] = nsteps_chunk.get(st[0], 0) + 1
    pos_in_chunk = 0
    for i, (j, b, n, off) in enumerate(steps):
        if i == 0 or steps[i - 1][0] != j:
            pos_in_chunk = 0
            if j in (1, 2, 4, 6, 8, 10): stamp(a, 3 + (1, 2, 4, 6, 8, 10).index(j))
            if j + PD < len(chunks):
                side += chunk_vmem(j + PD)
            if j == 0:
                def st_loads(k0):
                    def f():
                        for nb in range(k0, k0 + 2):
                            a("s_mov_b32 s29, %d" % (nb * 16384))
                            a("buffer_load_dword v%d, v6, s[16:19], s29 offen" % (STR + nb), tag="st")
                    return f
                side += [st_loads(k) for k in range(0, 16, 2)]
            if j == 1:
                def ext1():
                    a("s_add_u32 s27, s32, s26")
                    a("s_add_u32 m0, s26, %d" % EXT)
                    a("buffer_load_dwordx4 v2, s[16:19], s27 offen lds", tag=("c", 1 + PD))
                def ext2():
                    a("s_add_u32 s28, s26, 4096")
                    a("s_min_u32 s28, s28, 6144")
                    a("s_add_u32 s27, s32, s28")
                    a("s_add_u32 m0, s28, %d" % EXT)
                    a("buffer_load_dwordx4 v2, s[16:19], s27 offen lds", tag=("c", 1 + PD))
                side = [ext1, ext2] + side
            if j == 4:
                a.wait_vm("st")
                valu += stats_code()
        if i + LA < len(steps):
            jn = steps[i + LA][0]
            if steps[i + LA - 1][0] != jn:
                a.wait_vm(("c", jn))
                a("s_barrier")
        a.wait_lg(("r", i))
        acc = vr(ACC + 16 * b, 16)
        bop = vr(BX, 4) if n == 32 else ar(4 * n, 4)
        a("v_mfma_f32_32x32x16_bf16 %s, %s, %s, %s" % (acc, vr(WB + (i % NWB) * 4, 4), bop, acc if b in first else "0"))
        first.add(b)
        if i + LA < len(steps):
            rd(i + LA)
        budget = 20
        remaining = nsteps_chunk[j] - pos_in_chunk
        if side and (len(side) * 2 >= remaining or pos_in_chunk % 2 == 0):
            side.pop(0)()
            budget -= 8
            if len(side) > remaining - 1 and side:
                side.pop(0)()
                budget -= 8
        while valu and budget >= cost(valu[0]):
            budget -= cost(valu[0])
            a(valu.pop(0))
        pos_in_chunk += 1
        for bb, li in last_step_of_block.items():
            if i == li + 3:
                valu += epi_code(bb)
                done_blocks.append(bb)
    assert not side
    stamp(a, 11)
    for bb in range(7):
        if bb not in done_blocks:
            valu += epi_code(bb)
    for x in valu:
        a(x)
    stamp(a, 12)
    stamp_store(a, 3, 13)
    a.label("L_k4_end")
    a("s_endpgm")
    return kernel_text("k4_gateup_kernel", a, 204, 102, accum=204, nagpr=128)
```

```python
import sys
from common import *
import k1, k2, k35, k4
NAME = "sequential_preLN__softmax_full_mha__swiglu_ffn__prompt"
ref = open("cdna_kernels/%s.s.ref" % NAME).read()
hdr = []
for line in ref.split("\n"):
    if line.startswith(";") and "@launch" not in line and "Override launch" not in line and "grid=ceil" not in line:
        hdr.append(line)
    elif not line.startswith(";"):
        break
k2r = k2.k2()
ks = [(k1.k1(), "k1_qkv_kernel", 256, 256, 163840),
      (k2r[0], "k2_attn_kernel", 256, k2r[1], 163840),
      (k35.k35(3), "k3_wo_kernel", 284, 256, 57344),
      (k4.k4(), "k4_gateup_kernel", 256, 256, 163840),
      (k35.k35(5), "k5_down_kernel", 256, 256, 49152)]
out = "\n".join(hdr) + "\n"
for (_, nm, g, b, lds) in ks:
    out += "; @launch kernel=%s grid=(%d,1,1) block=(%d,1,1) lds=%d\n" % (nm, g, b, lds)
out += '.amdgcn_target "amdgcn-amd-amdhsa--gfx950"\n.text\n'
for ((body, desc), *_r) in ks:
    out += body
out += 'L_code_end:\n    s_endpgm\n.section .rodata,"a"\n'
for ((body, desc), *_r) in ks:
    out += desc
dst = sys.argv[1] if len(sys.argv) > 1 else "cdna_kernels/%s.s" % NAME
open(dst, "w").write(out)
print("wrote", dst, len(out))
```

```python
from asmlib import *
MB = 1 << 20
QF = 0
KF = 2 * MB
VF = 4 * MB
OF = 6 * MB
NOALIAS = bool(int(__import__("os").environ.get("STAMP", "0")))
AF = 17 * MB
HF = 8 * MB
WGUF = 10 * MB
WOF = 13 * MB + MB // 2
WDF = 14 * MB
KN = 15 * MB + 3 * MB // 4
CS = KN + 16384
ST = 16 * MB
WS_BYTES = 256 * MB
LOG2E = 1.4426950408889634
import struct
def f32hex(x):
    return "0x%08x" % struct.unpack("<I", struct.pack("<f", x))[0]
def vr(b, n):
    return "v[%d:%d]" % (b, b + n - 1)
def ar(b, n):
    return "a[%d:%d]" % (b, b + n - 1)
def srd(a, d, lo, nbytes):
    if d != lo:
        a("s_mov_b32 s%d, s%d" % (d, lo))
        a("s_mov_b32 s%d, s%d" % (d + 1, lo + 1))
    a("s_mov_b32 s%d, 0x%x" % (d + 2, nbytes))
    a("s_mov_b32 s%d, 0x00020000" % (d + 3))

import os
STAMP = bool(int(os.environ.get("STAMP", "0")))
TS = 28 * MB
def stamp(a, idx):
    if not STAMP: return
    a("s_memtime s[%d:%d]" % (72 + 2 * idx, 73 + 2 * idx))
    if idx == 0:
        a("s_memrealtime s[98:99]")
def stamp_store(a, kidx, n, wave_s="s20", vt=250):
    if not STAMP: return
    a("s_memrealtime s[100:101]")
    a("s_mov_b64 exec, -1")
    a("s_waitcnt lgkmcnt(0)")
    a("s_lshl_b32 s70, s2, 3")
    a("s_add_u32 s70, s70, %s" % wave_s)
    a("s_lshl_b32 s70, s70, 6")
    a("s_add_u32 s70, s70, %d" % (TS + kidx * 300 * 8 * 64))
    a("v_mov_b32 v0, 0")
    for i in range(n):
        a("v_mov_b32 v1, s%d" % (72 + 2 * i))
        a("buffer_store_dword v1, v0, s[16:19], s70 offen offset:%d" % (4 * i))
    a("v_mov_b32 v1, s98")
    a("buffer_store_dword v1, v0, s[16:19], s70 offen offset:56")
    a("v_mov_b32 v1, s100")
    a("buffer_store_dword v1, v0, s[16:19], s70 offen offset:60")

K5MAP = int(os.environ.get("K5MAP", 8))
```

```python
from common import *
from k4 import split3, pack2

def k1(PD=int(os.environ.get("K1PD", 3)), ROT=int(os.environ.get("K1ROT", 1))):
    a = Asm()
    NSLOT = 5
    a("s_cmp_ge_u32 s2, 256")
    a("s_cbranch_scc1 L_k1_end")
    stamp(a, 0)
    a("s_load_dwordx2 s[8:9], s[0:1], 0")
    a("s_load_dwordx2 s[12:13], s[0:1], 8")
    a("s_load_dwordx2 s[16:17], s[0:1], 72")
    a("v_and_b32 v1, 63, v0")
    a("v_lshrrev_b32 v40, 6, v0")
    a("s_and_b32 s21, s2, 6")
    a("s_lshl_b32 s21, s21, 2")
    a("s_lshr_b32 s22, s2, 3")
    a("s_and_b32 s22, s22, 7")
    a("v_readfirstlane_b32 s20, v40")
    a("s_add_u32 s21, s21, s22")
    a("s_and_b32 s22, s2, 1")
    a("s_lshl_b32 s22, s22, 2")
    a("s_lshr_b32 s23, s2, 6")
    a("s_add_u32 s22, s22, s23")
    a("s_lshl_b32 s24, s21, 16")
    a("s_lshl_b32 s25, s20, 14")
    a("s_add_u32 s24, s24, s25")
    a("v_lshrrev_b32 v40, 3, v1")
    a("v_lshlrev_b32 v41, 10, v40")
    a("v_add_u32 v41, s24, v41")
    a("v_and_b32 v42, 7, v1")
    a("v_lshrrev_b32 v43, 4, v1")
    a("v_xor_b32 v44, v42, v43")
    a("v_lshl_add_u32 v2, v44, 4, v41")
    a("v_xor_b32 v44, 4, v44")
    a("v_lshl_add_u32 v3, v44, 4, v41")
    a("v_add_u32 v3, 8192, v3")
    a("s_lshl_b32 s25, s20, 4")
    a("v_add_u32 v40, s25, v40")
    a("v_mul_u32_u24 v40, 3072, v40")
    a("v_and_b32 v43, 1, v43")
    a("v_lshlrev_b32 v43, 2, v43")
    a("v_xor_b32 v42, v42, v43")
    a("v_lshl_add_u32 v40, v42, 4, v40")
    a("s_lshl_b32 s25, s22, 7")
    a("v_add_u32 v4, s25, v40")
    a("s_lshl_b32 s27, s20, 11")
    a("s_mov_b32 s10, 0x200000")
    a("s_mov_b32 s11, 0x00020000")
    a("s_mov_b32 s14, %d" % (512 * 3072))
    a("s_mov_b32 s15, 0x00020000")
    a("s_mov_b32 s18, 0x%x" % WS_BYTES)
    a("s_mov_b32 s19, 0x00020000")
    a("s_lshr_b32 s28, s2, 3")
    a("s_lshr_b32 s29, s2, 6")
    a("s_lshl_b32 s29, s29, 1")
    a("s_add_u32 s28, s28, s29")
    if not ROT: a("s_mov_b32 s28, 0")
    for cc in range(8):
        a("s_add_u32 s29, s28, %d" % cc)
        a("s_and_b32 s29, s29, 7")
        a("s_lshl_b32 s%d, s29, 7" % (40 + cc))
        a("s_mul_i32 s%d, s29, %d" % (48 + cc, 64 * 3072))
    a("s_waitcnt lgkmcnt(0)")

    def chunk_vmem(cc):
        base = (cc % NSLOT) * 32768
        ops = []
        for i in range(2):
            def f2(i=i):
                a("s_add_u32 m0, s27, %d" % (base + i * 1024))
                a("s_nop 0")
                a("buffer_load_dwordx4 v%d, s[8:11], s%d offen lds" % (2 + i, 40 + cc), tag=("c", cc))
            ops.append(f2)
            for b in range(3):
                def g(i=i, b=b):
                    a("s_add_u32 m0, s27, %d" % (base + 8192 + b * 8192 + i * 1024 - b * 1024))
                    a("s_add_u32 s28, s%d, %d" % (48 + cc, i * 8 * 3072))
                    a("buffer_load_dwordx4 v4, s[12:15], s28 offen offset:%d lds" % (b * 1024), tag=("c", cc))
                ops.append(g)
        return ops
    for cc in range(2):
        for f in chunk_vmem(cc): f()

    XA, WA = 8, 20
    a("s_and_b32 s30, s20, 1")
    a("s_lshr_b32 s31, s20, 1")
    a("v_and_b32 v40, 31, v1")
    a("v_lshrrev_b32 v41, 5, v1")
    a("v_bfe_u32 v42, v40, 1, 3")
    a("v_lshlrev_b32 v43, 7, v40")
    a("s_lshl_b32 s29, s30, 12")
    a("v_add_u32 v43, s29, v43")
    a("v_bfe_u32 v44, v1, 2, 2")
    a("v_lshl_add_u32 v45, v41, 3, v44")
    a("v_lshlrev_b32 v45, 7, v45")
    a("v_lshrrev_b32 v44, 1, v44")
    a("v_xor_b32 v44, s31, v44")
    a("v_lshl_add_u32 v45, v44, 6, v45")
    a("v_and_b32 v44, 3, v1")
    a("v_lshl_add_u32 v45, v44, 3, v45")
    a("v_bfe_u32 v44, v1, 4, 1")
    a("v_lshl_add_u32 v45, v44, 5, v45")
    for j in range(4):
        a("s_xor_b32 s29, s20, %d" % j)
        a("s_lshl_b32 s32, s29, 1")
        a("v_add_u32 v44, s32, v41")
        a("v_xor_b32 v44, v44, v42")
        a("v_lshl_add_u32 v%d, v44, 4, v43" % (XA + j))
        a("s_lshl_b32 s32, s29, 11")
        a("v_add_u32 v%d, s32, v45" % (WA + j))
        for g in (1, 2):
            a("v_add_u32 v%d, 0x%x, v%d" % (XA + j + 4 * g, g * 65536, XA + j))
            a("v_add_u32 v%d, 0x%x, v%d" % (WA + j + 4 * g, g * 65536, WA + j))
    for cc in range(2, PD):
        for f in chunk_vmem(cc): f()
    SEL = 32
    a("v_lshrrev_b32 v40, 4, v1")
    a("v_lshrrev_b32 v42, 2, v1")
    a("v_xor_b32 v40, v40, v42")
    a("v_and_b32 v40, 1, v40")
    a("v_cmp_eq_u32 vcc, 0, v40")
    a("v_mov_b32 v42, 0x3f803f80")
    a("v_cndmask_b32 v%d, 0, v42, vcc" % SEL)
    for r in range(1, 4):
        a("v_mov_b32 v%d, v%d" % (SEL + r, SEL))
    a("v_mov_b32 v36, 0")
    a("v_mov_b32 v37, 0")

    XF = [48, 52]
    WF = [[56, 60, 64], [68, 72, 76]]
    ACC = [80, 96, 112]
    SX, CSR = 128, [132, 136, 140]
    UT = 144
    def reads(n):
        cc, j = n // 4, n % 4
        bf = n % 2
        slot = cc % NSLOT
        g, so = slot // 2, (slot % 2) * 32768
        L = []
        for b in range(3):
            for t in range(2):
                L.append("ds_read_b64_tr_b16 %s, v%d offset:%d" % (vr(WF[bf][b] + 2 * t, 2), WA + j + 4 * g, so + 8192 + b * 8192 + t * 512))
            if b == 0:
                L.append("ds_read_b128 %s, v%d offset:%d" % (vr(XF[bf], 4), XA + j + 4 * g, so))
        return L
    stamp(a, 1)
    a.wait_vm(("c", 0))
    a("s_barrier")
    stamp(a, 2)
    if STAMP: a.wait_lg0()
    for x in reads(0): a(x, tag=("r", 0))
    side = []
    for n in range(32):
        cc, j = n // 4, n % 4
        bf = n % 2
        if j == 0 and cc + PD < 8:
            side += chunk_vmem(cc + PD)
        rd = []
        if n + 1 < 32:
            if (n + 1) % 4 == 0:
                a.wait_vm(("c", cc + 1))
                a("s_barrier")
            rd = reads(n + 1)
        a.wait_lg(("r", n))
        z = n == 0
        x = vr(XF[bf], 4)
        def c_of(base, cnt, first):
            return "0" if first else vr(base, cnt)
        mf = []
        mf.append("v_mfma_f32_32x32x16_bf16 %s, %s, %s, %s" % (vr(ACC[0], 16), vr(WF[bf][0], 4), x, c_of(ACC[0], 16, z)))
        mf.append("v_mfma_f32_32x32x16_bf16 %s, %s, %s, %s" % (vr(ACC[1], 16), vr(WF[bf][1], 4), x, c_of(ACC[1], 16, z)))
        mf.append("v_mfma_f32_32x32x16_bf16 %s, %s, %s, %s" % (vr(ACC[2], 16), x, vr(WF[bf][2], 4), c_of(ACC[2], 16, z)))
        if j in (0, 1):
            mf.append("v_mfma_f32_16x16x32_bf16 %s, %s, %s, %s" % (vr(SX, 4), vr(SEL, 4), x, c_of(SX, 4, z)))
        if j in (0, 2):
            for b in range(3):
                mf.append("v_mfma_f32_16x16x32_bf16 %s, %s, %s, %s" % (vr(CSR[b], 4), vr(SEL, 4), vr(WF[bf][b], 4), c_of(CSR[b], 4, z)))
        va = []
        if j in (0, 1):
            for q in range(4):
                va.append("v_and_b32 v%d, 0xffff0000, v%d" % (UT + 2 * q, XF[bf] + q))
                va.append("v_lshlrev_b32 v%d, 16, v%d" % (UT + 2 * q + 1, XF[bf] + q))
            for q in range(4):
                va.append("v_fmac_f32 v36, v%d, v%d" % (UT + 2 * q, UT + 2 * q))
                va.append("v_fmac_f32 v37, v%d, v%d" % (UT + 2 * q + 1, UT + 2 * q + 1))
        nside = 1 if j in (0, 1) else 3
        for k, m in enumerate(mf):
            a(m)
            slots = 6 if k < 3 else 2
            nr = (3, 2, 2)[k] if k < 3 else 0
            for _ in range(nr):
                if rd:
                    a(rd.pop(0), tag=("r", n + 1)); slots -= 1
            if k < 3 and side and nside > 0:
                side.pop(0)(); nside -= 1; slots -= 3
            while va and slots > 0:
                a(va.pop(0)); slots -= 1
        for x_ in va: a(x_)
        assert not rd
    assert not side

    stamp(a, 3)
    SC = 131072
    a("v_add_f32 v36, v36, v37")
    a("v_mov_b32 v37, v36")
    a("v_permlane32_swap_b32 v36, v37")
    a("v_add_f32 v36, v36, v37")
    a("v_cmp_gt_u32 vcc, 32, v1")
    a("v_lshlrev_b32 v40, 2, v1")
    a("s_lshl_b32 s26, s20, 12")
    a("s_add_u32 s26, s26, %d" % SC)
    a("v_add_u32 v41, s26, v40")
    a("v_cndmask_b32 v42, v36, v%d, vcc" % SX)
    a("v_cndmask_b32 v43, v%d, v%d, vcc" % (CSR[1], CSR[0]))
    a("ds_write_b32 v41, v42")
    a("ds_write_b32 v41, v43 offset:256")
    a("ds_write_b32 v41, v%d offset:512" % CSR[2])
    a("v_and_b32 v40, 31, v1")
    a("v_lshlrev_b32 v40, 2, v40")
    a("s_xor_b32 s29, s26, 8192")
    a("v_add_u32 v44, s29, v40")
    a("s_xor_b32 s29, s26, 4096")
    a("v_add_u32 v45, s29, v40")
    a.wait_lg0()
    a("s_barrier")
    a("ds_read_b32 v%d, v44" % UT)
    a("ds_read_b32 v%d, v44 offset:128" % (UT + 1))
    a("ds_read_b32 v%d, v45 offset:256" % (UT + 2))
    a("ds_read_b32 v%d, v45 offset:384" % (UT + 3))
    a("ds_read_b32 v%d, v45 offset:512" % (UT + 4))
    a("s_lshl_b32 s33, s22, 1")
    a("s_add_u32 s33, s33, s31")
    a("s_lshl_b32 s23, s21, 1")
    a("s_add_u32 s23, s23, s30")
    a("s_lshl_b32 s29, s33, 17")
    a("s_lshl_b32 s32, s23, 10")
    a("s_add_u32 s29, s29, s32")
    a("v_lshlrev_b32 v2, 4, v1")
    a("v_add_u32 v2, s29, v2")
    a("v_bfe_u32 v3, v1, 4, 1")
    a("v_lshlrev_b32 v3, 16, v3")
    a("v_lshrrev_b32 v4, 5, v1")
    a("v_lshl_add_u32 v3, v4, 8, v3")
    a("v_and_b32 v5, 15, v1")
    a("v_lshl_add_u32 v3, v5, 4, v3")
    a("v_add_u32 v3, s29, v3")
    a("v_lshlrev_b32 v4, 4, v4")
    a("v_add_u32 v4, s26, v4")
    a("s_mov_b32 s34, %d" % VF)
    a("s_mov_b32 s35, %d" % KF)
    a("s_mov_b32 s36, %d" % (KF + 65536))
    a("s_mov_b32 s37, %d" % (QF + 65536))
    a("s_waitcnt lgkmcnt(3)")
    MU, R = 38, 39
    a("v_add_f32 v%d, v%d, v%d" % (UT, UT, SX))
    a("v_add_f32 v36, v36, v%d" % (UT + 1))
    a("v_mul_f32 v%d, 0xbb000000, v%d" % (MU, UT))
    a("v_mul_f32 v36, 0x3b000000, v36")
    a("v_fma_f32 v36, -v%d, v%d, v36" % (MU, MU))
    a("v_max_f32 v36, 0, v36")
    a("v_add_f32 v36, %s, v36" % f32hex(1e-5))
    a("v_rsq_f32 v%d, v36" % R)
    a("v_cndmask_b32 v%d, 0, v%d, vcc" % (MU, MU))
    MX, CX, T = 48, [56, 60, 64], 68
    split3(a, MU, T, T + 1, T + 2)
    a("ds_write_b32 v41, v%d offset:1024" % R)
    pack2(a, MX, T, T + 1)
    pack2(a, MX + 1, T, T + 2)
    a("v_mov_b32 v%d, v%d" % (MX + 2, MX))
    a("v_mov_b32 v%d, 0" % (MX + 3))
    RR = 152
    for g in range(4):
        a("ds_read_b128 %s, v4 offset:%d" % (vr(RR + 4 * g, 4), 1024 + g * 32))
    a("s_waitcnt lgkmcnt(5)")
    for b in (2, 1, 0):
        a("v_add_f32 v%d, v%d, v%d" % (UT + 2 + b, UT + 2 + b, CSR[b]))
        split3(a, UT + 2 + b, T, T + 1, T + 2)
        pack2(a, CX[b], T, T)
        pack2(a, CX[b] + 1, T + 1, T)
        pack2(a, CX[b] + 2, T + 2, T + 1)
        a("v_mov_b32 v%d, 0" % (CX[b] + 3))
        if b == 2:
            a("v_mfma_f32_32x32x16_bf16 %s, %s, %s, %s" % (vr(ACC[2], 16), vr(MX, 4), vr(CX[2], 4), vr(ACC[2], 16)))
        else:
            a("v_mfma_f32_32x32x16_bf16 %s, %s, %s, %s" % (vr(ACC[b], 16), vr(CX[b], 4), vr(MX, 4), vr(ACC[b], 16)))
    a("s_waitcnt lgkmcnt(0)")
    a.lg = []
    P = 168
    for r in range(16):
        a("v_mul_f32 v%d, v%d, v%d" % (ACC[2] + r, ACC[2] + r, RR + r))
    for r in range(8):
        a("v_cvt_pk_bf16_f32 v%d, v%d, v%d" % (P + r, ACC[2] + 2 * r, ACC[2] + 2 * r + 1))
    a("buffer_store_dwordx4 %s, v3, s[16:19], s34 offen" % vr(P, 4))
    a("buffer_store_dwordx4 %s, v3, s[16:19], s34 offen offset:512" % vr(P + 4, 4))
    for r in range(16):
        a("v_mul_f32 v%d, v%d, v%d" % (ACC[1] + r, R, ACC[1] + r))
    for r in range(8):
        a("v_cvt_pk_bf16_f32 v%d, v%d, v%d" % (P + 8 + r, ACC[1] + 2 * r, ACC[1] + 2 * r + 1))
    a("buffer_store_dwordx4 %s, v2, s[16:19], s35 offen" % vr(P + 8, 4))
    a("buffer_store_dwordx4 %s, v2, s[16:19], s36 offen" % vr(P + 12, 4))
    a("v_mul_f32 v37, %s, v%d" % (f32hex(0.25 * LOG2E), R))
    for r in range(16):
        a("v_mul_f32 v%d, v37, v%d" % (ACC[0] + r, ACC[0] + r))
    for r in range(8):
        a("v_cvt_pk_bf16_f32 v%d, v%d, v%d" % (P + 16 + r, ACC[0] + 2 * r, ACC[0] + 2 * r + 1))
    a("buffer_store_dwordx4 %s, v2, s[16:19], 0 offen" % vr(P + 16, 4))
    a("buffer_store_dwordx4 %s, v2, s[16:19], s37 offen" % vr(P + 20, 4))
    a("v_mov_b32 v40, 0")
    a("v_mov_b32 v41, 0")
    for r in range(4):
        a("v_dot2c_f32_bf16 v40, v%d, v%d" % (P + 8 + r, P + 8 + r))
        a("v_dot2c_f32_bf16 v41, v%d, v%d" % (P + 12 + r, P + 12 + r))
    a("v_permlane32_swap_b32 v40, v41")
    a("v_add_f32 v40, v40, v41")
    for sh in (1, 2, 4, 8):
        a("v_max_f32_dpp v40, v40, v40 row_shr:%d row_mask:0xf bank_mask:0xf bound_ctrl:0" % sh)
    a("v_max_f32_dpp v40, v40, v40 row_bcast:15 row_mask:0xa bank_mask:0xf")
    a("v_lshrrev_b32 v41, 5, v1")
    a("v_lshlrev_b32 v41, 8, v41")
    a("s_lshl_b32 s29, s33, 9")
    a("s_lshl_b32 s32, s23, 2")
    a("s_add_u32 s29, s29, s32")
    a("s_add_u32 s29, s29, %d" % KN)
    a("s_mov_b32 s38, 0x80000000")
    a("s_mov_b32 s39, 0x80000000")
    a("s_mov_b64 exec, s[38:39]")
    a("buffer_store_dword v40, v41, s[16:19], s29 offen")
    stamp(a, 4)
    stamp_store(a, 0, 5)
    a.label("L_k1_end")
    a("s_endpgm")
    return kernel_text("k1_qkv_kernel", a, 192, 102)
```

```python
from common import *

def k2(NW=int(os.environ.get("K2NW", 16)), PRIO=int(os.environ.get("K2PRIO", 1)), PREF=int(os.environ.get("PREF", 1))):
    a = Asm()
    KSP = NW // 8
    NT = 64 // KSP
    NIT = NT // 8
    KL, VL, PL = 0, 65536, 131072
    PW = 32768 // NW
    a("s_cmp_ge_u32 s2, 256")
    a("s_cbranch_scc1 L_k2_end")
    stamp(a, 0)
    a("s_load_dwordx2 s[16:17], s[0:1], 72")
    a("s_load_dwordx2 s[40:41], s[0:1], 16")
    a("s_load_dwordx4 s[44:47], s[0:1], 32")
    a("s_load_dwordx2 s[42:43], s[0:1], 48")
    a("v_and_b32 v1, 63, v0")
    a("v_lshrrev_b32 v2, 6, v0")
    a("s_and_b32 s21, s2, 31")
    a("s_lshr_b32 s22, s2, 5")
    a("v_readfirstlane_b32 s20, v2")
    a("v_lshlrev_b32 v2, 4, v1")
    a("s_lshl_b32 s23, s21, 16")
    a("s_and_b32 s64, s20, 7")
    a("s_lshr_b32 s65, s20, 3")
    a("s_lshl_b32 s66, s65, 15")
    a("s_lshl_b32 s24, s64, 10")
    a("s_add_u32 s24, s24, s66")
    a("s_add_u32 s25, s23, s24")
    a("s_lshl_b32 s26, s22, 3")
    a("s_add_u32 s26, s26, s64")
    a("s_lshl_b32 s27, s26, 10")
    a("s_add_u32 s27, s27, s23")
    a("s_mov_b32 s18, 0x%x" % WS_BYTES)
    a("s_mov_b32 s19, 0x00020000")
    a("v_add_u32 v3, s25, v2")
    a("s_lshl_b32 s28, s21, 8")
    a("s_add_u32 s28, s28, %d" % KN)
    a("v_lshlrev_b32 v4, 2, v1")
    a("s_waitcnt lgkmcnt(0)")
    Q, NM, S, P, O, KFR, VFR = 8, 16, [32, 48], 64, 72, [88, 92], [96, 104]
    def kv_dma(c):
        a("s_add_u32 m0, s24, %d" % (KL + c * 8192))
        a("s_mov_b32 s29, %d" % (KF + c * 8192))
        a("buffer_load_dwordx4 v3, s[16:19], s29 offen lds", tag=("kv", c))
        a("s_add_u32 m0, s24, %d" % (VL + c * 8192))
        a("s_mov_b32 s29, %d" % (VF + c * 8192))
        a("buffer_load_dwordx4 v3, s[16:19], s29 offen lds", tag=("kv", c))
    a("buffer_load_dwordx4 %s, v2, s[16:19], s27 offen" % vr(Q, 4), tag="q")
    a("buffer_load_dword v5, v4, s[16:19], s28 offen", tag="q")
    kv_dma(0)
    a("v_mov_b32 v6, 0x3f803f80")
    for b in range(2):
        for r in range(8):
            a("v_mov_b32 v%d, v6" % (VFR[b] + r))
    a("s_mov_b32 s60, 0x0000ffff")
    a("s_mov_b32 s61, 0x0000ffff")
    a("v_lshrrev_b32 v6, 5, v1")
    a("v_lshlrev_b32 v6, 8, v6")
    a("v_and_b32 v7, 15, v1")
    a("v_lshl_add_u32 v6, v7, 4, v6")
    a("v_add_u32 v6, %d, v6" % VL)
    a("v_add_u32 v6, s66, v6")
    a("v_add_u32 v7, s66, v2")
    for r in range(16):
        a("v_mov_b32 v%d, 0" % (O + r))
    for r in range(4, 8):
        a("v_mov_b32 v%d, 0" % (P + r))
    a("s_lshl_b32 s30, s64, 12")
    a("s_add_u32 s30, s30, %d" % PL)
    a("v_lshrrev_b32 v116, 3, v1")
    a("v_and_b32 v117, 7, v1")
    a("v_lshlrev_b32 v117, 4, v117")
    a("v_bfe_u32 v112, v1, 2, 2")
    a("v_lshrrev_b32 v113, 5, v1")
    a("v_lshl_add_u32 v112, v113, 2, v112")
    a("v_lshlrev_b32 v112, 7, v112")
    a("v_and_b32 v113, 3, v1")
    a("v_lshl_add_u32 v112, v113, 3, v112")
    a("v_add_u32 v112, s30, v112")
    a("v_bfe_u32 v113, v1, 4, 1")
    a("s_sub_u32 s38, s2, 72")
    a("s_cmp_ge_u32 s2, 184")
    a("s_cselect_b32 s38, s38, s2")
    a("s_cmp_ge_u32 s2, 112")
    a("s_cbranch_scc1 L_k2_prep_plain")
    a("s_lshr_b32 s31, s2, 2")
    a("s_and_b32 s32, s2, 3")
    a("s_lshl_b32 s32, s32, 3")
    a("s_add_u32 s32, s32, s64")
    a("s_mul_i32 s33, s32, %d" % (16 * 3584))
    a("s_lshl_b32 s34, s31, 7")
    a("s_add_u32 s68, s33, s34")
    a("s_add_u32 s69, s68, %d" % (8 * 3584))
    a("s_mov_b32 s70, s68")
    a("s_mov_b32 s71, s69")
    a("v_mul_u32_u24 v116, 3584, v116")
    a("v_add_u32 v116, v116, v117")
    a("s_mov_b32 s48, s44")
    a("s_mov_b32 s49, s45")
    a("s_mov_b32 s50, %d" % (512 * 3584))
    a("s_mov_b32 s51, 0x00020000")
    a("s_mov_b32 s52, s46")
    a("s_mov_b32 s53, s47")
    a("s_mov_b32 s54, %d" % (512 * 3584))
    a("s_mov_b32 s55, 0x00020000")
    a("v_lshl_add_u32 v112, v113, 11, v112")
    a("v_add_u32 v113, 32, v112")
    a("v_add_u32 v114, 64, v112")
    a("v_add_u32 v115, 96, v112")
    a("s_lshl_b32 s33, s31, 17")
    a("s_lshl_b32 s34, s32, 10")
    a("s_add_u32 s33, s33, s34")
    a("s_add_u32 s56, s33, %d" % WGUF)
    a("s_add_u32 s57, s56, 32768")
    a("s_add_u32 s58, s56, 65536")
    a("s_add_u32 s59, s56, 98304")
    a("s_branch L_k2_prep_done")
    a.label("L_k2_prep_plain")
    a("s_cmp_ge_u32 s38, 128")
    a("s_cselect_b32 s48, s42, s40")
    a("s_cselect_b32 s49, s43, s41")
    a("s_mov_b32 s50, %d" % (512 * 1024))
    a("s_cselect_b32 s50, %d, s50" % (1792 * 1024))
    a("s_mov_b32 s51, 0x00020000")
    a("s_mov_b32 s52, s48")
    a("s_mov_b32 s53, s49")
    a("s_mov_b32 s54, s50")
    a("s_mov_b32 s55, 0x00020000")
    a("s_mov_b32 s31, 112")
    a("s_cselect_b32 s31, 128, s31")
    a("s_mov_b32 s35, %d" % WDF)
    a("s_mov_b32 s36, %d" % WOF)
    a("s_cselect_b32 s35, s35, s36")
    a("s_cselect_b32 s36, 112, 32")
    a("s_sub_u32 s31, s38, s31")
    a("s_and_b32 s32, s31, 7")
    a("s_lshr_b32 s31, s31, 3")
    a("s_lshl_b32 s31, s31, 4")
    a("s_lshl_b32 s33, s64, 1")
    a("s_add_u32 s31, s31, s33")
    a("s_lshl_b32 s33, s31, 14")
    a("s_lshl_b32 s34, s32, 7")
    a("s_add_u32 s68, s33, s34")
    a("s_add_u32 s69, s68, 8192")
    a("s_add_u32 s70, s68, 16384")
    a("s_add_u32 s71, s68, 24576")
    a("v_lshl_add_u32 v116, v116, 10, v117")
    a("v_lshl_add_u32 v112, v113, 5, v112")
    a("v_add_u32 v113, 64, v112")
    a("v_add_u32 v114, 2048, v112")
    a("v_add_u32 v115, 2112, v112")
    a("s_lshl_b32 s32, s32, 1")
    a("s_mul_i32 s32, s32, s36")
    a("s_add_u32 s32, s32, s31")
    a("s_lshl_b32 s32, s32, 10")
    a("s_add_u32 s56, s35, s32")
    a("s_lshl_b32 s36, s36, 10")
    a("s_add_u32 s57, s56, s36")
    a("s_add_u32 s58, s56, 1024")
    a("s_add_u32 s59, s57, 1024")
    a.label("L_k2_prep_done")
    a.wait_vm("q")
    a("v_mov_b32 v12, 0")
    for r in range(4):
        a("v_dot2c_f32_bf16 v12, v%d, v%d" % (Q + r, Q + r))
    for sh in (1, 2, 4, 8):
        a("v_max_f32_dpp v5, v5, v5 row_shr:%d row_mask:0xf bank_mask:0xf bound_ctrl:0" % sh)
    a("v_max_f32_dpp v5, v5, v5 row_bcast:15 row_mask:0xa bank_mask:0xf")
    a("v_max_f32_dpp v5, v5, v5 row_bcast:31 row_mask:0xc bank_mask:0xf")
    a("v_mov_b32 v13, v12")
    a("v_permlane32_swap_b32 v12, v13")
    a("v_add_f32 v12, v12, v13")
    a("v_readlane_b32 s62, v5, 63")
    a("v_mul_f32 v12, s62, v12")
    a("v_sqrt_f32 v12, v12")
    a("v_mul_f32 v%d, %s, v12" % (NM, f32hex(-1.01)))
    for r in range(1, 16):
        a("v_mov_b32 v%d, v%d" % (NM + r, NM))
    stamp(a, 1)
    a.wait_vm(("kv", 0))
    a("s_barrier")
    stamp(a, 2)
    if STAMP: a.wait_lg0()

    def k_read(t, off):
        a("ds_read_b128 %s, v7 offset:%d" % (vr(KFR[t % 2], 4), KL + off * 1024))
    def v_read(t, off):
        a("s_mov_b64 exec, s[60:61]")
        a("ds_read_b128 %s, v6 offset:%d" % (vr(VFR[t % 2], 4), off * 1024))
        a("ds_read_b128 %s, v6 offset:%d" % (vr(VFR[t % 2] + 4, 4), off * 1024 + 512))
        a("s_mov_b64 exec, -1")
    def qk(t):
        a("v_mfma_f32_32x32x16_bf16 %s, %s, %s, %s" % (vr(S[t % 2], 16), vr(KFR[t % 2], 4), vr(Q, 4), vr(NM, 16)))
    def pv(t, mm):
        a("v_mfma_f32_32x32x16_bf16 %s, %s, %s, %s" % (vr(O, 16), vr(VFR[t % 2] + 4 * mm, 4), vr(P + 4 * mm, 4), vr(O, 16)))
    k_read(0, 0)
    k_read(1, 1)
    v_read(0, 0)
    a("s_mov_b32 s63, 1")
    if PRIO: a("s_setprio 3")
    a("s_waitcnt lgkmcnt(3)")
    qk(0)
    for c in range(1, NIT):
        kv_dma(c)
    def prep_ld(i):
        a("s_add_u32 m0, s30, %d" % (i * 1024))
        a("s_nop 0")
        a("buffer_load_dwordx4 v116, s[%d:%d], s%d offen lds" % ((48, 51, 68 + i) if i < 2 else (52, 55, 68 + i)))
    if KSP == 2:
        a("s_cmp_eq_u32 s65, 0")
        a("s_cbranch_scc1 L_k2_noprepld")
    for i in range(4):
        prep_ld(i)
    a.label("L_k2_noprepld")
    a("s_nop 3")
    def body(peel):
        for t in range(8):
            s = S[t % 2]
            def e(i): a("v_exp_f32 v%d, v%d" % (s + i, s + i))
            def c(i): a("v_cvt_pk_bf16_f32 v%d, v%d, v%d" % (P + i, s + 2 * i, s + 2 * i + 1))
            a("s_waitcnt lgkmcnt(0)")
            qk(t + 1)
            if t == 6:
                if peel:
                    stamp(a, 5)
                    a("s_branch L_k2_b1")
                    a.label("L_k2_b1_back")
                    stamp(a, 6)
                    a("s_barrier")
                    if PRIO: a("s_setprio 3")
                    stamp(a, 7)

                else:
                    a("s_branch L_k2_sync")
                    a.label("L_k2_sync_back")
            k_read(t + 2, t + 2)
            e(0); e(1); e(2); c(0); e(3)
            pv(t - 1, 1)
            v_read(t + 1, t + 1)
            e(4); c(1); e(5); e(6); c(2); e(7); e(8); c(3); e(9); e(10)
            pv(t, 0)
            if peel and PRIO and t in (2, 4):
                a("s_setprio %d" % (2 if t == 2 else 1))
            c(4); e(11); e(12); c(5); e(13); e(14); e(15); c(6)
            if t == 7:
                a("v_add_u32 v7, 8192, v7")
                a("v_add_u32 v6, 8192, v6")
                if not peel:
                    a("s_add_u32 s63, s63, 1")
            c(7)
    body(True)
    stamp(a, 9)
    a.raw(".p2align 6")
    a.label("L_k2_loop")
    body(False)
    a("s_cmp_lt_u32 s63, %d" % NIT)
    a("s_cbranch_scc1 L_k2_loop")
    a("s_nop 1")
    pv(7, 1)
    stamp(a, 3)
    L = O + 8
    if KSP == 2:
        a("s_waitcnt lgkmcnt(0)")
        a("v_add_u32 v12, s30, v2")
        a("s_cmp_eq_u32 s65, 0")
        a("s_cbranch_scc1 L_k2_low")
        a("s_nop 15")
        for q in range(3):
            a("ds_write_b128 v12, %s offset:%d" % (vr(O + 4 * q, 4), q * 1024))
        a("s_waitcnt lgkmcnt(0)")
        a("s_barrier")
        a("s_branch L_k2_hi_end")
        a.label("L_k2_low")
        a("s_barrier")
        for q in range(3):
            a("ds_read_b128 %s, v12 offset:%d" % (vr(S[0] + 4 * q, 4), q * 1024))
        a("s_waitcnt lgkmcnt(0)")
        for r in range(9):
            a("v_add_f32 v%d, v%d, v%d" % (O + r, O + r, S[0] + r))
    else:
        a("s_nop 15")
    a("v_cmp_nle_f32 vcc, %s, v%d" % (f32hex(2.0 ** -64), L))
    a("s_nop 4")
    a("s_cbranch_vccnz L_k2_fallback")
    a.label("L_k2_fin")
    a("v_rcp_f32 v12, v%d" % L)
    for r in range(8):
        a("v_mul_f32 v%d, v%d, v12" % (O + r, O + r))
    for r in range(4):
        a("v_cvt_pk_bf16_f32 v%d, v%d, v%d" % (P + r, O + 2 * r, O + 2 * r + 1))
    a("s_lshl_b32 s29, s26, 15")
    a("s_lshl_b32 s30, s21, 10")
    a("s_add_u32 s29, s29, s30")
    a("s_add_u32 s29, s29, %d" % OF)
    a("buffer_store_dwordx4 %s, v2, s[16:19], s29 offen" % vr(P, 4))
    a.label("L_k2_hi_end")
    stamp(a, 4)
    if STAMP:
        a("s_cmp_ge_u32 s20, 8")
        a("s_cselect_b32 s20, 7, s20")
    stamp_store(a, 1, 10)
    a.label("L_k2_end")
    a("s_endpgm")
    a.label("L_k2_sync")
    if PRIO:
        lv = {NIT - 1: 0, NIT - 2: 1, NIT - 3 if NIT == 4 else NIT - 4: 2}
        for it, p in lv.items():
            a("s_cmp_eq_u32 s63, %d" % it)
            a("s_cbranch_scc0 L_k2_pr%d" % it)
            if p == 0 and KSP == 2:
                a("s_cmp_eq_u32 s65, 0")
                a("s_cbranch_scc0 L_k2_pr%d" % it)
            a("s_setprio %d" % p)
            a.label("L_k2_pr%d" % it)
    a("s_cmp_eq_u32 s63, %d" % (NIT // 2))
    a("s_cbranch_scc1 L_k2_pref")
    a("s_cmp_eq_u32 s63, %d" % (NIT // 4))
    a("s_cbranch_scc0 L_k2_sync_back")
    a.label("L_k2_sync1")
    if KSP == 2:
        a("s_cmp_eq_u32 s65, 0")
        a("s_cbranch_scc1 L_k2_sync_back")
    a("s_waitcnt vmcnt(0)")
    T = 120
    for half in range(2):
        for q in range(2):
            for t in range(2):
                a("ds_read_b64_tr_b16 %s, v%d offset:%d" % (vr(T + 4 * q + 2 * t, 2), 112 + 2 * half + q, t * 1024))
        a("s_waitcnt lgkmcnt(0)")
        for q in range(2):
            a("buffer_store_dwordx4 %s, v2, s[16:19], s%d offen sc1" % (vr(T + 4 * q, 4), 56 + 2 * half + q))
        a("s_nop 1")
    a("s_branch L_k2_sync_back")
    a.label("L_k2_b1")
    a("s_cmp_eq_u32 s65, 0")
    a("s_cbranch_scc1 L_k2_b1l")
    a("s_waitcnt vmcnt(4)")
    a("s_branch L_k2_b1_back")
    a.label("L_k2_b1l")
    a("s_waitcnt vmcnt(0)")
    a("s_branch L_k2_b1_back")
    assert NW == 16
    a.label("L_k2_pref")
    if PREF:
        a("s_lshr_b32 s31, s2, 3")
        a("s_lshl_b32 s32, s31, 14")
        a("s_lshl_b32 s33, s20, 10")
        a("s_add_u32 s32, s32, s33")
        a("s_add_u32 s32, s32, %d" % WOF)
        a("buffer_load_dwordx4 v[120:123], v2, s[16:19], s32 offen")
        a("s_and_b32 s32, s2, 1")
        a("s_mul_i32 s32, s32, %d" % (56 * 32768))
        a("s_mul_i32 s31, s31, 57344")
        a("s_add_u32 s32, s32, s31")
        a("s_add_u32 s67, s32, %d" % WGUF)
        a("s_add_u32 s32, s67, s33")
        a("buffer_load_dwordx4 v[124:127], v2, s[16:19], s32 offen")
        a("s_min_u32 s33, s33, 7168")
        a("s_add_u32 s32, s67, s33")
        a("s_add_u32 s32, s32, 16384")
        a("buffer_load_dwordx4 v[124:127], v2, s[16:19], s32 offen")
    if PREF:
        a("s_lshl_b32 s33, s20, 11")
        a("s_add_u32 s32, s67, s33")
        a("s_add_u32 s32, s32, 24576")
        a("buffer_load_dwordx4 v[120:123], v2, s[16:19], s32 offen")
        a("buffer_load_dwordx4 v[124:127], v2, s[16:19], s32 offen offset:1024")
    a("s_branch L_k2_sync_back")
    a.label("L_k2_fallback")
    a("v_mov_b32 v7, v2")
    a("v_mov_b32 v12, 0xff800000")
    a("s_mov_b32 s63, 0")
    a.label("L_k2_fb_loop")
    a("ds_read_b128 %s, v7" % vr(KFR[0], 4))
    a("v_add_u32 v7, 1024, v7")
    a("s_waitcnt lgkmcnt(0)")
    a("v_mfma_f32_32x32x16_bf16 %s, %s, %s, 0" % (vr(S[0], 16), vr(KFR[0], 4), vr(Q, 4)))
    for r in range(0, 16, 2):
        a("v_max3_f32 v12, v12, v%d, v%d" % (S[0] + r, S[0] + r + 1))
    a("s_add_u32 s63, s63, 1")
    a("s_cmp_lt_u32 s63, 64")
    a("s_cbranch_scc1 L_k2_fb_loop")
    a("v_mov_b32 v13, v12")
    a("v_permlane32_swap_b32 v12, v13")
    a("v_max_f32 v12, v12, v13")
    a("v_sub_f32 v12, 0, v12")
    for r in range(16):
        a("v_mov_b32 v%d, v12" % (NM + r))
    for r in range(16):
        a("v_mov_b32 v%d, 0" % (O + r))
    a("v_mov_b32 v7, v2")
    a("v_subrev_u32 v6, %d, v6" % (NT * 1024))
    a("s_mov_b32 s63, 0")
    a.label("L_k2_fb2_loop")
    a("ds_read_b128 %s, v7" % vr(KFR[0], 4))
    v_read(0, 0)
    a("v_add_u32 v7, 1024, v7")
    a("v_add_u32 v6, 1024, v6")
    a("s_waitcnt lgkmcnt(0)")
    qk(0)
    for r in range(16):
        a("v_exp_f32 v%d, v%d" % (S[0] + r, S[0] + r))
    for r in range(8):
        a("v_cvt_pk_bf16_f32 v%d, v%d, v%d" % (P + r, S[0] + 2 * r, S[0] + 2 * r + 1))
    pv(0, 0)
    pv(0, 1)
    a("s_add_u32 s63, s63, 1")
    a("s_cmp_lt_u32 s63, 64")
    a("s_cbranch_scc1 L_k2_fb2_loop")
    a("s_nop 15")
    a("s_branch L_k2_fin")
    return kernel_text("k2_attn_kernel", a, 128, 102), NW * 64
```

```python
from common import *
from k4 import split3, pack2

def k35(which, ROT=int(os.environ.get("K35ROT", 1))):
    a = Asm()
    nm = "k%d" % which
    KS = 32 if which == 3 else 112
    KW = KS // 4
    BBASE = OF if which == 3 else AF
    ABASE = WOF if which == 3 else WDF
    a("s_cmp_ge_u32 s2, %d" % (284 if which == 3 else 256))
    a("s_cbranch_scc1 L_%s_end" % nm)
    stamp(a, 0)
    a("s_load_dwordx2 s[16:17], s[0:1], 72")
    a("s_load_dwordx2 s[8:9], s[0:1], %d" % (0 if which == 3 else 56))
    a("v_and_b32 v1, 63, v0")
    a("v_lshrrev_b32 v2, 6, v0")
    a("s_mov_b32 s18, 0x%x" % WS_BYTES)
    a("s_mov_b32 s19, 0x00020000")
    a("v_readfirstlane_b32 s20, v2")
    a("v_lshlrev_b32 v2, 4, v1")
    a("s_mov_b32 s10, 0x200000")
    a("s_mov_b32 s11, 0x00020000")
    if which == 3:
        a("s_cmp_ge_u32 s2, 256")
        a("s_cbranch_scc1 L_k3_colsum")
    if which == 3 or K5MAP == 8:
        a("s_and_b32 s21, s2, 7")
        a("s_lshl_b32 s21, s21, 2")
        a("s_lshr_b32 s22, s2, 3")
        a("s_and_b32 s22, s22, 3")
        a("s_add_u32 s21, s21, s22")
        a("s_lshr_b32 s22, s2, 5")
        a("s_min_u32 s31, s22, %d" % (7 if which == 3 else 6))
    else:
        a("s_and_b32 s21, s2, 6")
        a("s_lshl_b32 s21, s21, 2")
        a("s_lshr_b32 s22, s2, 3")
        a("s_and_b32 s22, s22, 7")
        a("s_add_u32 s21, s21, s22")
        a("s_and_b32 s22, s2, 1")
        a("s_lshl_b32 s22, s22, 2")
        a("s_lshr_b32 s31, s2, 6")
        a("s_add_u32 s22, s22, s31")
        a("s_lshl_b32 s31, s31, 1")
    a("s_and_b32 s27, s20, 1")
    a("s_lshr_b32 s28, s20, 1")
    a("s_lshl_b32 s29, s22, 1")
    a("s_add_u32 s27, s27, s29")
    a("s_lshl_b32 s29, s21, 1")
    a("s_add_u32 s28, s28, s29")
    a("s_mul_i32 s24, s20, %d" % (KW * 1024))
    a("v_add_u32 v3, s24, v2")
    a("s_mul_i32 s23, s27, %d" % (KS * 1024))
    a("s_add_u32 s23, s23, %d" % ABASE)
    a("v_add_u32 v4, s23, v3")
    a("s_xor_b32 s23, s27, 1")
    a("s_mul_i32 s23, s23, %d" % (KS * 1024))
    a("s_add_u32 s23, s23, %d" % ABASE)
    a("v_add_u32 v5, s23, v3")
    a("s_mul_i32 s23, s28, %d" % (KS * 1024))
    a("s_add_u32 s23, s23, %d" % BBASE)
    a("v_add_u32 v6, s23, v3")
    a("s_xor_b32 s23, s28, 1")
    a("s_mul_i32 s23, s23, %d" % (KS * 1024))
    a("s_add_u32 s23, s23, %d" % BBASE)
    a("v_add_u32 v7, s23, v3")
    WIN = min(KW, 13)
    OWN = 16
    RES = 32
    XA = 40
    FB = 44
    def frag(i, j):
        return FB + ((i % WIN) * 4 + j) * 4
    G = 4 if which == 5 else 1
    NG = KW // G
    if ROT:
        a("s_lshl_b32 s25, s31, %d" % (10 + (2 if G == 4 else 0)))
    else:
        a("s_mov_b32 s25, 0")
    for g in range(NG):
        a("s_add_u32 s%d, s25, %d" % (40 + g, g * G * 1024))
        a("s_cmp_ge_u32 s%d, %d" % (40 + g, KW * 1024))
        a("s_cselect_b32 s26, %d, 0" % (KW * 1024))
        a("s_sub_u32 s%d, s%d, s26" % (40 + g, 40 + g))
    a("s_waitcnt lgkmcnt(0)")
    def loads(i):
        for j in (2, 0, 1, 3):
            a("buffer_load_dwordx4 %s, v%d, s[16:19], s%d offen offset:%d" % (vr(frag(i, j), 4), 4 + j, 40 + i // G, (i % G) * 1024), tag=("f", i))
    def res_loads():
        if which == 3:
            a("v_lshrrev_b32 v8, 3, v1")
            a("v_lshlrev_b32 v8, 10, v8")
            a("v_and_b32 v9, 7, v1")
            a("v_lshrrev_b32 v14, 4, v1")
            a("v_xor_b32 v9, v9, v14")
            a("v_lshl_add_u32 v14, v9, 4, v8")
            a("v_xor_b32 v9, 4, v9")
            a("v_lshl_add_u32 v15, v9, 4, v8")
            a("s_lshl_b32 s29, s21, 16")
            a("s_lshl_b32 s30, s20, 14")
            a("s_add_u32 s29, s29, s30")
            a("s_lshl_b32 s30, s22, 7")
            a("s_add_u32 s29, s29, s30")
            a("s_lshl_b32 s30, s20, 11")
            a("s_add_u32 m0, s30, 49152")
            a("s_add_u32 s32, s29, 8192")
            a("buffer_load_dwordx4 v14, s[8:11], s29 offen lds", tag="res")
            a("s_add_u32 m0, s30, %d" % (49152 + 1024))
            a("s_nop 0")
            a("buffer_load_dwordx4 v15, s[8:11], s32 offen lds", tag="res")
            a("v_and_b32 v8, 31, v1")
            a("v_bfe_u32 v9, v8, 1, 3")
            a("s_and_b32 s30, s20, 1")
            a("s_lshl_b32 s30, s30, 2")
            a("v_xor_b32 v9, s30, v9")
            a("v_lshlrev_b32 v8, 7, v8")
            a("v_lshrrev_b32 v14, 5, v1")
            a("v_lshl_add_u32 v8, v14, 3, v8")
            a("s_lshr_b32 s30, s20, 1")
            a("s_lshl_b32 s30, s30, 12")
            a("s_add_u32 s30, s30, 49152")
            a("v_add_u32 v8, s30, v8")
            for g in range(4):
                a("v_xor_b32 v14, %d, v9" % g)
                a("v_lshl_add_u32 v%d, v14, 4, v8" % (XA + g))
        else:
            a("s_lshl_b32 s29, s28, 15")
            a("s_lshl_b32 s30, s27, 11")
            a("s_add_u32 s29, s29, s30")
            a("s_add_u32 s29, s29, %d" % HF)
            a("buffer_load_dwordx4 %s, v2, s[16:19], s29 offen" % vr(RES, 4), tag="res")
            a("buffer_load_dwordx4 %s, v2, s[16:19], s29 offen offset:1024" % vr(RES + 4, 4), tag="res")
    NPRE = min(WIN, 6)
    for i in range(NPRE):
        loads(i)
    if which == 3:
        res_loads()
    for j in range(1, 4):
        a("s_xor_b32 s29, s20, %d" % j)
        a("s_mul_i32 s29, s29, 12288")
        a("s_add_u32 s29, s29, %d" % ((j - 1) * 4096))
        a("v_add_u32 v%d, s29, v2" % (9 + j))
    a("s_mul_i32 s29, s20, 12288")
    a("v_add_u32 v13, s29, v2")
    def accr(j):
        return vr(OWN, 16) if j == 0 else ar(16 * (j - 1), 16)
    stamp(a, 1)
    nxt = NPRE
    for i in range(KW):
        a.wait_vm(("f", i))
        if i == 0: stamp(a, 2)
        order = (1, 2, 3, 0)
        for j in order:
            an, bt = j & 1, j >> 1
            a("v_mfma_f32_32x32x16_bf16 %s, %s, %s, %s" % (accr(j), vr(frag(i, an), 4), vr(frag(i, 2 + bt), 4), "0" if i == 0 else accr(j)))
        cnt = 0
        while nxt < KW and nxt < i + 1 + WIN and cnt < 2:
            loads(nxt); nxt += 1; cnt += 1
            if nxt == KW and which == 5:
                res_loads()
    stamp(a, 3)
    for j in range(1, 4):
        for q in range(4):
            a("ds_write_b128 v%d, %s offset:%d" % (9 + j, ar(16 * (j - 1) + 4 * q, 4), q * 1024))
    a.wait_vm("res")
    U = FB + 48
    def unpack():
        for r in range(8):
            a("v_lshlrev_b32 v%d, 16, v%d" % (U + 2 * r, RES + r))
            a("v_and_b32 v%d, 0xffff0000, v%d" % (U + 2 * r + 1, RES + r))
        for r in range(16):
            a("v_add_f32 v%d, v%d, v%d" % (U + r, U + r, OWN + r))
    if which == 5:
        unpack()
    a.wait_lg0()
    a("s_barrier")
    if which == 3:
        for g in range(4):
            a("ds_read_b64 %s, v%d" % (vr(RES + 2 * g, 2), XA + g), tag="xr")
    R = FB
    for q in range(4):
        for src in range(3):
            a("ds_read_b128 %s, v13 offset:%d" % (vr(R + src * 16 + 4 * q, 4), src * 4096 + q * 1024), tag=("rd", q))
    Pk = U + 16
    if which == 3:
        a("s_lshl_b32 s29, s28, 15")
        a("s_lshl_b32 s30, s27, 11")
        a("s_add_u32 s29, s29, s30")
        a("s_add_u32 s29, s29, %d" % HF)
        a("v_mov_b32 v10, 0")
        a("v_mov_b32 v11, 0")
        a("v_mov_b32 v12, 0x3f803f80")
        a("s_lshr_b32 s31, s27, 2")
        a("s_lshl_b32 s31, s31, 10")
        a("s_and_b32 s30, s27, 3")
        a("s_lshl_b32 s30, s30, 2")
        a("s_add_u32 s31, s31, s30")
        a("s_lshl_b32 s30, s28, 12")
        a("s_add_u32 s31, s31, s30")
        a("s_add_u32 s31, s31, %d" % ST)
    else:
        a("v_and_b32 v8, 31, v1")
        a("v_lshlrev_b32 v8, 10, v8")
        a("v_lshrrev_b32 v9, 5, v1")
        a("v_lshl_add_u32 v8, v9, 4, v8")
        a("s_lshl_b32 s29, s28, 15")
        a("s_lshl_b32 s30, s27, 6")
        a("s_add_u32 s29, s29, s30")
    if which == 3:
        a.wait_lg("xr")
        unpack()
    for q in range(4):
        a.wait_lg(("rd", q))
        for e in range(4):
            r = 4 * q + e
            a("v_add_f32 v%d, v%d, v%d" % (R + r, R + r, R + 16 + r))
            a("v_add_f32 v%d, v%d, v%d" % (U + r, U + r, R + 32 + r))
        for e in range(4):
            r = 4 * q + e
            a("v_add_f32 v%d, v%d, v%d" % (U + r, U + r, R + r))
        for r in (2 * q, 2 * q + 1):
            a("v_cvt_pk_bf16_f32 v%d, v%d, v%d" % (Pk + r, U + 2 * r, U + 2 * r + 1))
        if q % 2 == 1:
            hb = Pk + 2 * (q - 1)
            if which == 3:
                a("buffer_store_dwordx4 %s, v2, s[16:19], s29 offen offset:%d" % (vr(hb, 4), (q // 2) * 1024))
            else:
                a("v_permlane32_swap_b32 v%d, v%d" % (hb + 0, hb + 2))
                a("v_permlane32_swap_b32 v%d, v%d" % (hb + 1, hb + 3))
                a("buffer_store_dwordx4 %s, v8, s[8:11], s29 offen offset:%d" % (vr(hb, 4), (q // 2) * 32))
    if which == 3:
        for r in range(8):
            a("v_dot2c_f32_bf16 v10, v%d, v12" % (Pk + r))
            a("v_dot2c_f32_bf16 v11, v%d, v%d" % (Pk + r, Pk + r))
        a("v_permlane32_swap_b32 v10, v11")
        a("v_add_f32 v10, v10, v11")
        a("buffer_store_dword v10, v2, s[16:19], s31 offen")
        stamp(a, 4)
        stamp_store(a, 2, 5)
        a("s_endpgm")
        a.label("L_k3_colsum")
        a.vm = []
        a("s_sub_u32 s21, s2, 256")
        a("s_and_b32 s22, s21, 1")
        a("s_mul_i32 s22, s22, 56")
        a("s_lshr_b32 s21, s21, 1")
        a("s_lshl_b32 s21, s21, 2")
        a("s_add_u32 s21, s21, s22")
        a("s_add_u32 s21, s21, s20")
        a("s_lshl_b32 s22, s21, 15")
        a("s_add_u32 s22, s22, %d" % WGUF)
        a("v_add_u32 v4, s22, v2")
        a("v_lshrrev_b32 v8, 4, v1")
        a("v_lshrrev_b32 v9, 2, v1")
        a("v_xor_b32 v8, v8, v9")
        a("v_and_b32 v8, 1, v8")
        a("v_cmp_eq_u32 vcc, 0, v8")
        a("v_mov_b32 v9, 0x3f803f80")
        a("v_cndmask_b32 v8, 0, v9, vcc")
        a("v_mov_b32 v9, v8")
        a("v_mov_b32 v10, v8")
        a("v_mov_b32 v11, v8")
        a("s_waitcnt lgkmcnt(0)")
        for i in range(32):
            if i % 4 == 0:
                a("s_mov_b32 s26, %d" % (i * 1024))
            a("buffer_load_dwordx4 %s, v4, s[16:19], s26 offen offset:%d" % (vr(FB + 4 * i, 4), (i % 4) * 1024), tag=("c", i))
        for i in range(32):
            if i % 4 == 0:
                a.wait_vm(("c", i + 3))
            a("v_mfma_f32_16x16x32_bf16 v[12:15], v[8:11], %s, %s" % (vr(FB + 4 * i, 4), "0" if i == 0 else "v[12:15]"))
        split3(a, 12, 4, 5, 6)
        pack2(a, 8, 4, 4)
        pack2(a, 9, 5, 4)
        pack2(a, 10, 6, 5)
        a("v_mov_b32 v11, 0")
        a("s_mov_b32 exec_lo, 0")
        a("v_mov_b32 v8, 0")
        a("v_mov_b32 v9, 0")
        a("v_mov_b32 v10, 0")
        a("s_mov_b64 exec, -1")
        a("s_lshl_b32 s22, s21, 10")
        a("s_add_u32 s22, s22, %d" % CS)
        a("buffer_store_dwordx4 v[8:11], v2, s[16:19], s22 offen")
    else:
        stamp(a, 4)
        stamp_store(a, 4, 5)
    a.label("L_%s_end" % nm)
    a("s_endpgm")
    nv = max(FB + WIN * 16, Pk + 8, FB + 128 if which == 3 else 0)
    nv = (nv + 3) // 4 * 4
    name = "k3_wo_kernel" if which == 3 else "k5_down_kernel"
    return kernel_text(name, a, nv, 102, accum=nv, nagpr=48)
```

```python
from common import *

def split3(a, src, hi, mid, lo):
    a("v_and_b32 v%d, 0xffff0000, v%d" % (hi, src))
    a("v_sub_f32 v%d, v%d, v%d" % (lo, src, hi))
    a("v_and_b32 v%d, 0xffff0000, v%d" % (mid, lo))
    a("v_sub_f32 v%d, v%d, v%d" % (lo, lo, mid))
    a("v_and_b32 v%d, 0xffff0000, v%d" % (lo, lo))
def pack2(a, dst, e_lo, e_hi):
    a("v_lshrrev_b32 v%d, 16, v%d" % (dst, e_lo))
    a("v_or_b32 v%d, v%d, v%d" % (dst, dst, e_hi))

def k4(NA=int(os.environ.get("K4NA", 4)), PD=int(os.environ.get("K4PD", 2)), ROT=int(os.environ.get("K4ROT", 1)), PREF=int(os.environ.get("PREF", 1))):
    a = Asm()
    NB = 7 - NA
    a("s_cmp_ge_u32 s2, 256")
    a("s_cbranch_scc1 L_k4_end")
    stamp(a, 0)
    a("s_load_dwordx2 s[16:17], s[0:1], 72")
    a("v_and_b32 v1, 63, v0")
    a("v_lshrrev_b32 v2, 6, v0")
    a("s_mov_b32 s18, 0x%x" % WS_BYTES)
    a("s_mov_b32 s19, 0x00020000")
    a("v_readfirstlane_b32 s20, v2")
    a("v_lshlrev_b32 v2, 4, v1")
    a("s_lshr_b32 s33, s2, 3")
    a("s_and_b32 s21, s2, 6")
    a("s_lshl_b32 s21, s21, 1")
    a("s_and_b32 s34, s33, 3")
    a("s_add_u32 s21, s21, s34")
    a("s_and_b32 s22, s2, 1")
    a("s_lshl_b32 s22, s22, 3")
    a("s_lshr_b32 s35, s33, 2")
    a("s_add_u32 s22, s22, s35")
    a("s_lshl_b32 s34, s35, 12")
    if ROT == 0: a("s_mov_b32 s34, 0")
    a("s_lshl_b32 s23, s21, 2")
    a("s_add_u32 s23, s23, s20")
    a("s_lshl_b32 s24, s23, 15")
    a("s_add_u32 s24, s24, %d" % HF)
    a("v_add_u32 v3, s24, v2")
    a("s_mul_i32 s25, s22, %d" % (7 * 32768))
    a("s_lshl_b32 s26, s20, 10")
    a("s_add_u32 s25, s25, %d" % WGUF)
    a("v_add_u32 v4, s25, v2")
    a("v_add_u32 v5, s26, v4")
    for c in range(8):
        a("s_add_u32 s%d, s34, %d" % (40 + c, c * 4096))
        a("s_and_b32 s%d, s%d, 0x7fff" % (40 + c, 40 + c))
    a("s_waitcnt lgkmcnt(0)")
    stamp(a, 9)
    HB = 8
    ACC = 136
    ACC = 16
    WB = 128
    NWB = 8
    E = 160
    PKR = 168
    STR = 176
    BX = 192
    MU, RS, C1, KK = 196, 197, 198, 199
    T0 = 200
    SLOTA = NA * 4096
    EXT = 0
    RING = 8192
    SLOT = max(SLOTA, 16384)
    NSLOT = (163840 - RING) // SLOT
    chunks = [("A", c) for c in range(8)] + [("B", b, hh) for b in range(NA, 7) for hh in range(2)]
    def chunk_vmem(j):
        ops = []
        ch = chunks[j]
        base = RING + (j % NSLOT) * SLOT
        if ch[0] == "A":
            c = ch[1]
            for i in range(max(4, NA)):
                if i < 4:
                    def f(i=i, c=c):
                        a("buffer_load_dwordx4 %s, v3, s[16:19], s%d offen offset:%d" % (ar((4 * c + i) * 4, 4), 40 + c, i * 1024), tag=("c", j))
                    ops.append(f)
                if i < NA:
                    def f(b=i, c=c):
                        a("s_add_u32 m0, s26, %d" % (base + b * 4096))
                        a("s_add_u32 s27, s%d, %d" % (40 + c, b * 32768))
                        a("buffer_load_dwordx4 v5, s[16:19], s27 offen lds", tag=("c", j))
                    ops.append(f)
        else:
            b, hh = ch[1], ch[2]
            for q in range(4):
                def f(q=q, b=b, hh=hh):
                    a("s_add_u32 m0, s26, %d" % (base + q * 4096))
                    a("s_add_u32 s27, s%d, %d" % (40 + 4 * hh + q, b * 32768))
                    a("buffer_load_dwordx4 v5, s[16:19], s27 offen lds", tag=("c", j))
                ops.append(f)
        return ops
    for f in chunk_vmem(0): f()
    stamp(a, 10)
    a("s_lshl_b32 s29, s23, 12")
    a("s_add_u32 s29, s29, %d" % ST)
    for j in range(1, PD):
        for f in chunk_vmem(j): f()
    a("v_mov_b32 v8, v2")
    a("v_add_u32 v9, 0x10000, v2")
    a("v_add_u32 v10, 0x20000, v2")
    def lds_addr(off):
        return "v%d" % (8 + off // 65536), off % 65536
    steps = []
    for j, ch in enumerate(chunks):
        base = RING + (j % NSLOT) * SLOT
        if ch[0] == "A":
            for kk in range(4):
                for b in range(NA):
                    steps.append((j, b, 4 * ch[1] + kk, base + b * 4096 + kk * 1024))
            if ch[1] == 7:
                for b in range(NA):
                    steps.append((j, b, 32, EXT + b * 1024))
        else:
            b, hh = ch[1], ch[2]
            for kk in range(16):
                steps.append((j, b, 16 * hh + kk, base + kk * 1024))
            if hh == 1:
                steps.append((j, b, 32, EXT + b * 1024))
    LA = NWB - 2
    def rd(i):
        j, b, n, off = steps[i]
        r, o = lds_addr(off)
        a("ds_read_b128 %s, %s offset:%d" % (vr(WB + (i % NWB) * 4, 4), r, o), tag=("r", i))
    side = []
    valu = []
    def stats_code():
        L = []
        for k in (8, 4, 2, 1):
            for i in range(k):
                L.append("v_add_f32 v%d, v%d, v%d" % (STR + i, STR + i, STR + i + k))
        L.append("v_mov_b32 v%d, v%d" % (STR + 1, STR))
        L.append("v_permlane32_swap_b32 v%d, v%d" % (STR, STR + 1))
        L.append("v_mul_f32 v%d, 0xbb000000, v%d" % (MU, STR))
        L.append("v_mul_f32 v%d, 0x3b000000, v%d" % (STR + 1, STR + 1))
        L.append("v_fma_f32 v%d, -v%d, v%d, v%d" % (STR + 1, MU, MU, STR + 1))
        L.append("v_max_f32 v%d, 0, v%d" % (STR + 1, STR + 1))
        L.append("v_add_f32 v%d, %s, v%d" % (STR + 1, f32hex(1e-5), STR + 1))
        L.append("v_rsq_f32 v%d, v%d" % (RS, STR + 1))
        L.append("v_sqrt_f32 v%d, v%d" % (KK, STR + 1))
        L.append("v_mul_f32 v%d, %s, v%d" % (C1, f32hex(-LOG2E), RS))
        L.append("v_mul_f32 v%d, %s, v%d" % (KK, f32hex(-LOG2E), KK))
        t = Asm()
        split3(t, MU, T0, T0 + 1, T0 + 2)
        pack2(t, BX, T0, T0 + 1)
        pack2(t, BX + 1, T0, T0 + 2)
        pack2(t, BX + 2, T0, T0 + 1)
        L += [x.text for x in t.items]
        L.append("v_mov_b32 v%d, 0" % (BX + 3))
        return L
    def epi_code(b):
        G, U = ACC + 16 * b, ACC + 16 * b + 8
        L = []
        for r in range(8):
            L.append("v_mul_f32 v%d, v%d, v%d" % (G + r, C1, G + r))
        for r in range(8):
            L.append("v_exp_f32 v%d, v%d" % (E + r, G + r))
            L.append("v_mul_f32 v%d, v%d, v%d" % (U + r, G + r, U + r))
        for r in range(8):
            L.append("v_fma_f32 v%d, v%d, v%d, v%d" % (E + r, E + r, KK, KK))
        for r in range(8):
            L.append("v_rcp_f32 v%d, v%d" % (E + r, E + r))
            if r > 0:
                L.append("v_mul_f32 v%d, v%d, v%d" % (U + r - 1, U + r - 1, E + r - 1))
        L.append("v_mul_f32 v%d, v%d, v%d" % (U + 7, U + 7, E + 7))
        PK = PKR + (b % 2) * 4
        for r in range(4):
            L.append("v_cvt_pk_bf16_f32 v%d, v%d, v%d" % (PK + r, U + 2 * r, U + 2 * r + 1))
        L.append("buffer_store_dwordx4 %s, v2, s[16:19], %s offen offset:%d" % (vr(PK, 4), "s30" if b < 4 else "s31", (b % 4) * 1024))
        return L
    def cost(s):
        return 8 if s.split()[0] in TRANS else 4
    a("s_mul_i32 s30, s23, %d" % (112 * 1024))
    a("s_mul_i32 s31, s22, %d" % (7 * 1024))
    a("s_add_u32 s30, s30, s31")
    a("s_add_u32 s30, s30, %d" % AF)
    a("s_add_u32 s32, s31, %d" % CS)
    a("s_add_u32 s31, s30, 4096")
    NPF = 14 if K5MAP == 8 else 7
    a("s_mul_i32 s36, s33, %d" % (NPF * 4096))
    a("s_mul_i32 s37, s20, %d" % (NPF * 1024))
    a("s_add_u32 s36, s36, s37")
    if K5MAP != 8:
        a("s_and_b32 s37, s2, 1")
        a("s_mul_i32 s37, s37, %d" % (8 * 112 * 1024))
        a("s_add_u32 s36, s36, s37")
    a("s_add_u32 s36, s36, %d" % WDF)
    stamp(a, 1)
    a.wait_vm(("c", 0))
    a("s_barrier")
    stamp(a, 2)
    if STAMP: a.wait_lg0()
    for i in range(LA):
        rd(i)
    first = set()
    done_blocks = []
    last_step_of_block = {}
    for i, st in enumerate(steps):
        last_step_of_block[st[1]] = i
    nsteps_chunk = {}
    for st in steps:
        nsteps_chunk[st[0]] = nsteps_chunk.get(st[0], 0) + 1
    pos_in_chunk = 0
    nextq = PD
    for i, (j, b, n, off) in enumerate(steps):
        if i == 0 or steps[i - 1][0] != j:
            pos_in_chunk = 0
            if j in (1, 2, 4, 6, 8, 10): stamp(a, 3 + (1, 2, 4, 6, 8, 10).index(j))
            while nextq < len(chunks) and (nextq <= j + PD or (j >= 8 - PD + 1 and nextq <= j + PD + (j - (8 - PD)) and nextq < j + NSLOT - 1)):
                side += chunk_vmem(nextq); nextq += 1
                if nextq == len(chunks) and PREF:
                    def pf(k):
                        def f():
                            a("s_add_u32 s27, s36, %d" % (k * 1024))
                            a("buffer_load_dwordx4 v[204:207], v2, s[16:19], s27 offen", tag="pf")
                        return f
                    side += [pf(k) for k in range(NPF)]
            if j == 0:
                def st_loads(q):
                    def f():
                        a("buffer_load_dwordx4 %s, v2, s[16:19], s29 offen offset:%d" % (vr(STR + 4 * q, 4), q * 1024), tag="st")
                    return f
                side += [st_loads(q) for q in range(4)]
            if j == 1:
                def ext1():
                    a("s_add_u32 s27, s32, s26")
                    a("s_add_u32 m0, s26, %d" % EXT)
                    a("buffer_load_dwordx4 v2, s[16:19], s27 offen lds", tag=("c", 1 + PD))
                def ext2():
                    a("s_add_u32 s28, s26, 4096")
                    a("s_min_u32 s28, s28, 6144")
                    a("s_add_u32 s27, s32, s28")
                    a("s_add_u32 m0, s28, %d" % EXT)
                    a("buffer_load_dwordx4 v2, s[16:19], s27 offen lds", tag=("c", 1 + PD))
                side = [ext1, ext2] + side
            if j == 4:
                a.wait_vm("st")
                valu += stats_code()
        if i + LA < len(steps):
            jn = steps[i + LA][0]
            if steps[i + LA - 1][0] != jn:
                a.wait_vm(("c", jn))
                a("s_barrier")
        if i % 2 == 0:
            a.wait_lg([("r", i), ("r", i + 1)])
        acc = vr(ACC + 16 * b, 16)
        bop = vr(BX, 4) if n == 32 else ar(4 * n, 4)
        a("v_mfma_f32_32x32x16_bf16 %s, %s, %s, %s" % (acc, vr(WB + (i % NWB) * 4, 4), bop, acc if b in first else "0"))
        first.add(b)
        if i + LA < len(steps):
            rd(i + LA)
        budget = 16 if i % 2 == 1 else 20
        remaining = nsteps_chunk[j] - pos_in_chunk
        if side and (len(side) * 2 >= remaining or pos_in_chunk % 2 == 0):
            side.pop(0)()
            budget -= 8
            if len(side) > remaining - 1 and side and j < 8:
                side.pop(0)()
                budget -= 8
        while valu and budget >= cost(valu[0]):
            budget -= cost(valu[0])
            a(valu.pop(0))
        pos_in_chunk += 1
        for bb, li in last_step_of_block.items():
            if i == li + 3:
                valu += epi_code(bb)
                done_blocks.append(bb)
    assert not side
    stamp(a, 11)
    for bb in range(7):
        if bb not in done_blocks:
            valu += epi_code(bb)
    for x in valu:
        a(x)
    stamp(a, 12)
    stamp_store(a, 3, 13)
    a.label("L_k4_end")
    a("s_endpgm")
    return kernel_text("k4_gateup_kernel", a, 208, 102, accum=208, nagpr=128)
```

```python
import sys
from common import *
src = open(sys.argv[1]).read()
def off(k, which, wg=0):
    return TS + k * 300 * 512 + wg * 512 + which
def mk(name, A, B, mult):
    body = """.globl zp_kernel
.p2align 8
.type zp_kernel,@function
zp_kernel:
    s_cmp_ge_u32 s2, 1
    s_cbranch_scc1 L_zp_end
    s_load_dwordx2 s[4:5], s[0:1], 72
    s_memrealtime s[10:11]
    s_waitcnt lgkmcnt(0)
    s_add_u32 s6, s4, %d
    s_addc_u32 s7, s5, 0
    s_load_dword s8, s[6:7], 0
    s_add_u32 s6, s4, %d
    s_addc_u32 s7, s5, 0
    s_load_dword s9, s[6:7], 0
    s_waitcnt lgkmcnt(0)
    s_sub_u32 s8, s9, s8
    s_min_u32 s8, s8, 10000
    s_mul_i32 s8, s8, %d
L_zp_loop:
    s_memrealtime s[12:13]
    s_waitcnt lgkmcnt(0)
    s_sub_u32 s14, s12, s10
    s_cmp_lt_u32 s14, s8
    s_cbranch_scc1 L_zp_loop
L_zp_end:
    s_endpgm
""" % (A, B, mult)
    desc = """.p2align 6
.amdhsa_kernel zp_kernel
  .amdhsa_next_free_vgpr 8
  .amdhsa_next_free_sgpr 24
  .amdhsa_accum_offset 8
  .amdhsa_group_segment_fixed_size 0
  .amdhsa_kernarg_size 80
  .amdhsa_user_sgpr_count 2
  .amdhsa_user_sgpr_kernarg_segment_ptr 1
  .amdhsa_system_sgpr_workgroup_id_x 1
.end_amdhsa_kernel
"""
    t = src.replace('.amdgcn_target', "; @launch kernel=zp_kernel grid=(1,1,1) block=(64,1,1) lds=0\n" + '.amdgcn_target', 1)
    t = t.replace('.section .rodata,"a"\n', body + '.section .rodata,"a"\n' + desc, 1)
    open(name, "w").write(t)
mk("pr0.s", off(0, 56), off(0, 56), 4)
for i in range(4):
    mk("pr%d.s" % (i + 1), off(i, 56), off(i + 1, 56), 4)
mk("pr5.s", off(4, 56), off(4, 60), 4)
```

```python
from asmlib import *
MB = 1 << 20
QF = 0
KF = 2 * MB
VF = 4 * MB
OF = 6 * MB
NOALIAS = bool(int(__import__("os").environ.get("STAMP", "0")))
AF = 17 * MB
HF = 8 * MB
WGUF = 10 * MB
WOF = 13 * MB + MB // 2
WDF = 14 * MB
KN = 15 * MB + 3 * MB // 4
CS = KN + 16384
ST = 16 * MB
WS_BYTES = 256 * MB
LOG2E = 1.4426950408889634
import struct
def f32hex(x):
    return "0x%08x" % struct.unpack("<I", struct.pack("<f", x))[0]
def vr(b, n):
    return "v[%d:%d]" % (b, b + n - 1)
def ar(b, n):
    return "a[%d:%d]" % (b, b + n - 1)
def srd(a, d, lo, nbytes):
    if d != lo:
        a("s_mov_b32 s%d, s%d" % (d, lo))
        a("s_mov_b32 s%d, s%d" % (d + 1, lo + 1))
    a("s_mov_b32 s%d, 0x%x" % (d + 2, nbytes))
    a("s_mov_b32 s%d, 0x00020000" % (d + 3))

import os
STAMP = bool(int(os.environ.get("STAMP", "0")))
TS = 28 * MB
def stamp(a, idx):
    if not STAMP: return
    a("s_memtime s[%d:%d]" % (72 + 2 * idx, 73 + 2 * idx))
    if idx == 0:
        a("s_memrealtime s[98:99]")
def stamp_store(a, kidx, n, wave_s="s20", vt=250):
    if not STAMP: return
    a("s_memrealtime s[100:101]")
    a("s_mov_b64 exec, -1")
    a("s_waitcnt lgkmcnt(0)")
    a("s_lshl_b32 s70, s2, 3")
    a("s_add_u32 s70, s70, %s" % wave_s)
    a("s_lshl_b32 s70, s70, 6")
    a("s_add_u32 s70, s70, %d" % (TS + kidx * 300 * 8 * 64))
    a("v_mov_b32 v0, 0")
    for i in range(n):
        a("v_mov_b32 v1, s%d" % (72 + 2 * i))
        a("buffer_store_dword v1, v0, s[16:19], s70 offen offset:%d" % (4 * i))
    a("v_mov_b32 v1, s98")
    a("buffer_store_dword v1, v0, s[16:19], s70 offen offset:56")
    a("v_mov_b32 v1, s100")
    a("buffer_store_dword v1, v0, s[16:19], s70 offen offset:60")

K5MAP = int(os.environ.get("K5MAP", 8))

CODEPF = int(os.environ.get("CODEPF", 1))
_pf_id = [0]
def code_prefetch(a, start_label, nkb, vdst, vlane16, sbase=92, s_off="s91", per_wave=None, wave_s="s20"):
    if not CODEPF: return
    _pf_id[0] += 1
    L = "L_pf%d" % _pf_id[0]
    a("s_getpc_b64 s[%d:%d]" % (sbase, sbase + 1))
    a.label(L)
    a("s_add_u32 s%d, s%d, %s-%s" % (sbase, sbase, start_label, L))
    a("s_addc_u32 s%d, s%d, %s" % (sbase + 1, sbase + 1, "0" if start_label > "k1_r" else "-1"))
    a("s_mov_b32 s%d, L_code_end-%s" % (sbase + 2, start_label))
    a("s_mov_b32 s%d, 0x00020000" % (sbase + 3))
    n = per_wave if per_wave else nkb
    if per_wave:
        a("s_mul_i32 %s, %s, %d" % (s_off, wave_s, per_wave * 1024))
    else:
        a("s_mov_b32 %s, 0" % s_off)
    for i in range(n):
        if i and i % 4 == 0:
            a("s_add_u32 %s, %s, 4096" % (s_off, s_off))
        a("buffer_load_dwordx4 %s, %s, s[%d:%d], %s offen offset:%d" % (vr(vdst, 4), vlane16, sbase, sbase + 3, s_off, (i % 4) * 1024), tag="codepf")

TOUCH = int(os.environ.get("TOUCH", 1))
```

```python
from common import *
from k4 import split3, pack2

def k1(PD=int(os.environ.get("K1PD", 2)), ROT=int(os.environ.get("K1ROT", 1))):
    a = Asm()
    NSLOT = 5
    a("s_cmp_ge_u32 s2, 256")
    a("s_cbranch_scc1 L_k1_end")
    stamp(a, 0)
    a("s_load_dwordx2 s[8:9], s[0:1], 0")
    a("s_load_dwordx2 s[12:13], s[0:1], 8")
    a("s_load_dwordx2 s[16:17], s[0:1], 72")
    a("v_and_b32 v1, 63, v0")
    a("v_lshrrev_b32 v40, 6, v0")
    a("s_and_b32 s21, s2, 6")
    a("s_lshl_b32 s21, s21, 2")
    a("s_lshr_b32 s22, s2, 3")
    a("s_and_b32 s22, s22, 7")
    a("v_readfirstlane_b32 s20, v40")
    a("s_add_u32 s21, s21, s22")
    a("s_and_b32 s22, s2, 1")
    a("s_lshl_b32 s22, s22, 2")
    a("s_lshr_b32 s23, s2, 6")
    a("s_add_u32 s22, s22, s23")
    a("s_lshl_b32 s24, s21, 16")
    a("s_lshl_b32 s25, s20, 14")
    a("s_add_u32 s24, s24, s25")
    a("v_lshrrev_b32 v40, 3, v1")
    a("v_lshlrev_b32 v41, 10, v40")
    a("v_add_u32 v41, s24, v41")
    a("v_and_b32 v42, 7, v1")
    a("v_lshrrev_b32 v43, 4, v1")
    a("v_xor_b32 v44, v42, v43")
    a("v_lshl_add_u32 v2, v44, 4, v41")
    a("v_xor_b32 v44, 4, v44")
    a("v_lshl_add_u32 v3, v44, 4, v41")
    a("v_add_u32 v3, 8192, v3")
    a("s_lshl_b32 s25, s20, 4")
    a("v_add_u32 v40, s25, v40")
    a("v_mul_u32_u24 v40, 3072, v40")
    a("v_and_b32 v43, 1, v43")
    a("v_lshlrev_b32 v43, 2, v43")
    a("v_xor_b32 v42, v42, v43")
    a("v_lshl_add_u32 v40, v42, 4, v40")
    a("s_lshl_b32 s25, s22, 7")
    a("v_add_u32 v4, s25, v40")
    a("s_lshl_b32 s27, s20, 11")
    a("s_mov_b32 s10, 0x200000")
    a("s_mov_b32 s11, 0x00020000")
    a("s_mov_b32 s14, %d" % (512 * 3072))
    a("s_mov_b32 s15, 0x00020000")
    a("s_mov_b32 s18, 0x%x" % WS_BYTES)
    a("s_mov_b32 s19, 0x00020000")
    a("s_lshr_b32 s28, s2, 3")
    a("s_lshr_b32 s29, s2, 6")
    a("s_lshl_b32 s29, s29, 1")
    a("s_add_u32 s28, s28, s29")
    if not ROT: a("s_mov_b32 s28, 0")
    for cc in range(8):
        a("s_add_u32 s29, s28, %d" % cc)
        a("s_and_b32 s29, s29, 7")
        a("s_lshl_b32 s%d, s29, 7" % (40 + cc))
        a("s_mul_i32 s%d, s29, %d" % (48 + cc, 64 * 3072))
    a("s_waitcnt lgkmcnt(0)")

    def chunk_vmem(cc):
        base = (cc % NSLOT) * 32768
        ops = []
        for i in range(2):
            def f2(i=i):
                a("s_add_u32 m0, s27, %d" % (base + i * 1024))
                a("s_nop 0")
                a("buffer_load_dwordx4 v%d, s[8:11], s%d offen lds" % (2 + i, 40 + cc), tag=("c", cc))
            ops.append(f2)
            for b in range(3):
                def g(i=i, b=b):
                    a("s_add_u32 m0, s27, %d" % (base + 8192 + b * 8192 + i * 1024 - b * 1024))
                    a("s_add_u32 s28, s%d, %d" % (48 + cc, i * 8 * 3072))
                    a("buffer_load_dwordx4 v4, s[12:15], s28 offen offset:%d lds" % (b * 1024), tag=("c", cc))
                ops.append(g)
        return ops
    for cc in range(2):
        for f in chunk_vmem(cc): f()

    if CODEPF:
        a("s_cmp_ge_u32 s2, 16")
        a("s_cbranch_scc1 L_k1_nopf")
        a("v_lshlrev_b32 v46, 4, v1")
        vm_save = list(a.vm)
        code_prefetch(a, "k1_qkv_kernel", 16, 184, "v46", per_wave=4)
        a.vm = vm_save
        a.label("L_k1_nopf")
    if TOUCH:
        a("s_lshr_b32 s31, s20, 1")
        a("s_lshl_b32 s33, s22, 1")
        a("s_add_u32 s33, s33, s31")
        a("s_lshl_b32 s29, s33, 17")
        a("s_lshl_b32 s32, s21, 11")
        a("s_add_u32 s29, s29, s32")
        a("v_mov_b32 v46, 0")
        for k, base in enumerate((QF, KF, VF, KN)):
            a("s_add_u32 s32, s29, %d" % base) if base != KN else a("s_mov_b32 s32, %d" % KN)
            a("buffer_load_dword v%d, v46, s[16:19], s32 offen" % (188 + k), tag="touch")
    XA, WA = 8, 20
    a("s_and_b32 s30, s20, 1")
    a("s_lshr_b32 s31, s20, 1")
    a("v_and_b32 v40, 31, v1")
    a("v_lshrrev_b32 v41, 5, v1")
    a("v_bfe_u32 v42, v40, 1, 3")
    a("v_lshlrev_b32 v43, 7, v40")
    a("s_lshl_b32 s29, s30, 12")
    a("v_add_u32 v43, s29, v43")
    a("v_bfe_u32 v44, v1, 2, 2")
    a("v_lshl_add_u32 v45, v41, 3, v44")
    a("v_lshlrev_b32 v45, 7, v45")
    a("v_lshrrev_b32 v44, 1, v44")
    a("v_xor_b32 v44, s31, v44")
    a("v_lshl_add_u32 v45, v44, 6, v45")
    a("v_and_b32 v44, 3, v1")
    a("v_lshl_add_u32 v45, v44, 3, v45")
    a("v_bfe_u32 v44, v1, 4, 1")
    a("v_lshl_add_u32 v45, v44, 5, v45")
    for j in range(4):
        a("s_xor_b32 s29, s20, %d" % j)
        a("s_lshl_b32 s32, s29, 1")
        a("v_add_u32 v44, s32, v41")
        a("v_xor_b32 v44, v44, v42")
        a("v_lshl_add_u32 v%d, v44, 4, v43" % (XA + j))
        a("s_lshl_b32 s32, s29, 11")
        a("v_add_u32 v%d, s32, v45" % (WA + j))
        for g in (1, 2):
            a("v_add_u32 v%d, 0x%x, v%d" % (XA + j + 4 * g, g * 65536, XA + j))
            a("v_add_u32 v%d, 0x%x, v%d" % (WA + j + 4 * g, g * 65536, WA + j))
    for cc in range(2, PD):
        for f in chunk_vmem(cc): f()
    SEL = 32
    a("v_lshrrev_b32 v40, 4, v1")
    a("v_lshrrev_b32 v42, 2, v1")
    a("v_xor_b32 v40, v40, v42")
    a("v_and_b32 v40, 1, v40")
    a("v_cmp_eq_u32 vcc, 0, v40")
    a("v_mov_b32 v42, 0x3f803f80")
    a("v_cndmask_b32 v%d, 0, v42, vcc" % SEL)
    for r in range(1, 4):
        a("v_mov_b32 v%d, v%d" % (SEL + r, SEL))
    a("v_mov_b32 v36, 0")
    a("v_mov_b32 v37, 0")

    XF = [48, 52]
    WF = [[56, 60, 64], [68, 72, 76]]
    ACC = [80, 96, 112]
    SX, CSR = 128, [132, 136, 140]
    UT = 144
    def reads(n):
        cc, j = n // 4, n % 4
        bf = n % 2
        slot = cc % NSLOT
        g, so = slot // 2, (slot % 2) * 32768
        L = []
        for b in range(3):
            for t in range(2):
                L.append("ds_read_b64_tr_b16 %s, v%d offset:%d" % (vr(WF[bf][b] + 2 * t, 2), WA + j + 4 * g, so + 8192 + b * 8192 + t * 512))
            if b == 0:
                L.append("ds_read_b128 %s, v%d offset:%d" % (vr(XF[bf], 4), XA + j + 4 * g, so))
        return L
    stamp(a, 1)
    a.wait_vm(("c", 0))
    a("s_barrier")
    stamp(a, 2)
    if STAMP: a.wait_lg0()
    for x in reads(0): a(x, tag=("r", 0))
    side = []
    for n in range(32):
        cc, j = n // 4, n % 4
        bf = n % 2
        if j == 0 and cc + PD < 8:
            side += chunk_vmem(cc + PD)
        rd = []
        if n + 1 < 32:
            if (n + 1) % 4 == 0:
                a.wait_vm(("c", cc + 1))
                a("s_barrier")
            rd = reads(n + 1)
        a.wait_lg(("r", n))
        z = n == 0
        x = vr(XF[bf], 4)
        def c_of(base, cnt, first):
            return "0" if first else vr(base, cnt)
        mf = []
        mf.append("v_mfma_f32_32x32x16_bf16 %s, %s, %s, %s" % (vr(ACC[0], 16), vr(WF[bf][0], 4), x, c_of(ACC[0], 16, z)))
        mf.append("v_mfma_f32_32x32x16_bf16 %s, %s, %s, %s" % (vr(ACC[1], 16), vr(WF[bf][1], 4), x, c_of(ACC[1], 16, z)))
        mf.append("v_mfma_f32_32x32x16_bf16 %s, %s, %s, %s" % (vr(ACC[2], 16), x, vr(WF[bf][2], 4), c_of(ACC[2], 16, z)))
        if j in (0, 1):
            mf.append("v_mfma_f32_16x16x32_bf16 %s, %s, %s, %s" % (vr(SX, 4), vr(SEL, 4), x, c_of(SX, 4, z)))
        if j in (0, 2):
            for b in range(3):
                mf.append("v_mfma_f32_16x16x32_bf16 %s, %s, %s, %s" % (vr(CSR[b], 4), vr(SEL, 4), vr(WF[bf][b], 4), c_of(CSR[b], 4, z)))
        va = []
        if j in (0, 1):
            for q in range(4):
                va.append("v_and_b32 v%d, 0xffff0000, v%d" % (UT + 2 * q, XF[bf] + q))
                va.append("v_lshlrev_b32 v%d, 16, v%d" % (UT + 2 * q + 1, XF[bf] + q))
            for q in range(4):
                va.append("v_fmac_f32 v36, v%d, v%d" % (UT + 2 * q, UT + 2 * q))
                va.append("v_fmac_f32 v37, v%d, v%d" % (UT + 2 * q + 1, UT + 2 * q + 1))
        nside = 1 if j in (0, 1) else 3
        for k, m in enumerate(mf):
            a(m)
            slots = 6 if k < 3 else 2
            nr = (3, 2, 2)[k] if k < 3 else 0
            for _ in range(nr):
                if rd:
                    a(rd.pop(0), tag=("r", n + 1)); slots -= 1
            if k < 3 and side and nside > 0:
                side.pop(0)(); nside -= 1; slots -= 3
            while va and slots > 0:
                a(va.pop(0)); slots -= 1
        for x_ in va: a(x_)
        assert not rd
    assert not side

    stamp(a, 3)
    SC = 131072
    a("v_add_f32 v36, v36, v37")
    a("v_mov_b32 v37, v36")
    a("v_permlane32_swap_b32 v36, v37")
    a("v_add_f32 v36, v36, v37")
    a("v_cmp_gt_u32 vcc, 32, v1")
    a("v_lshlrev_b32 v40, 2, v1")
    a("s_lshl_b32 s26, s20, 12")
    a("s_add_u32 s26, s26, %d" % SC)
    a("v_add_u32 v41, s26, v40")
    a("v_cndmask_b32 v42, v36, v%d, vcc" % SX)
    a("v_cndmask_b32 v43, v%d, v%d, vcc" % (CSR[1], CSR[0]))
    a("ds_write_b32 v41, v42")
    a("ds_write_b32 v41, v43 offset:256")
    a("ds_write_b32 v41, v%d offset:512" % CSR[2])
    a("v_and_b32 v40, 31, v1")
    a("v_lshlrev_b32 v40, 2, v40")
    a("s_xor_b32 s29, s26, 8192")
    a("v_add_u32 v44, s29, v40")
    a("s_xor_b32 s29, s26, 4096")
    a("v_add_u32 v45, s29, v40")
    a.wait_lg0()
    a("s_barrier")
    a("ds_read_b32 v%d, v44" % UT)
    a("ds_read_b32 v%d, v44 offset:128" % (UT + 1))
    a("ds_read_b32 v%d, v45 offset:256" % (UT + 2))
    a("ds_read_b32 v%d, v45 offset:384" % (UT + 3))
    a("ds_read_b32 v%d, v45 offset:512" % (UT + 4))
    a("s_lshl_b32 s33, s22, 1")
    a("s_add_u32 s33, s33, s31")
    a("s_lshl_b32 s23, s21, 1")
    a("s_add_u32 s23, s23, s30")
    a("s_lshl_b32 s29, s33, 17")
    a("s_lshl_b32 s32, s23, 10")
    a("s_add_u32 s29, s29, s32")
    a("v_lshlrev_b32 v2, 4, v1")
    a("v_add_u32 v2, s29, v2")
    a("v_bfe_u32 v3, v1, 4, 1")
    a("v_lshlrev_b32 v3, 16, v3")
    a("v_lshrrev_b32 v4, 5, v1")
    a("v_lshl_add_u32 v3, v4, 8, v3")
    a("v_and_b32 v5, 15, v1")
    a("v_lshl_add_u32 v3, v5, 4, v3")
    a("v_add_u32 v3, s29, v3")
    a("v_lshlrev_b32 v4, 4, v4")
    a("v_add_u32 v4, s26, v4")
    a("s_mov_b32 s34, %d" % VF)
    a("s_mov_b32 s35, %d" % KF)
    a("s_mov_b32 s36, %d" % (KF + 65536))
    a("s_mov_b32 s37, %d" % (QF + 65536))
    a("s_waitcnt lgkmcnt(3)")
    MU, R = 38, 39
    a("v_add_f32 v%d, v%d, v%d" % (UT, UT, SX))
    a("v_add_f32 v36, v36, v%d" % (UT + 1))
    a("v_mul_f32 v%d, 0xbb000000, v%d" % (MU, UT))
    a("v_mul_f32 v36, 0x3b000000, v36")
    a("v_fma_f32 v36, -v%d, v%d, v36" % (MU, MU))
    a("v_max_f32 v36, 0, v36")
    a("v_add_f32 v36, %s, v36" % f32hex(1e-5))
    a("v_rsq_f32 v%d, v36" % R)
    a("v_cndmask_b32 v%d, 0, v%d, vcc" % (MU, MU))
    MX, CX, T = 48, [56, 60, 64], 68
    split3(a, MU, T, T + 1, T + 2)
    a("ds_write_b32 v41, v%d offset:1024" % R)
    pack2(a, MX, T, T + 1)
    pack2(a, MX + 1, T, T + 2)
    a("v_mov_b32 v%d, v%d" % (MX + 2, MX))
    a("v_mov_b32 v%d, 0" % (MX + 3))
    RR = 152
    for g in range(4):
        a("ds_read_b128 %s, v4 offset:%d" % (vr(RR + 4 * g, 4), 1024 + g * 32))
    a("s_waitcnt lgkmcnt(5)")
    for b in (2, 1, 0):
        a("v_add_f32 v%d, v%d, v%d" % (UT + 2 + b, UT + 2 + b, CSR[b]))
        split3(a, UT + 2 + b, T, T + 1, T + 2)
        pack2(a, CX[b], T, T)
        pack2(a, CX[b] + 1, T + 1, T)
        pack2(a, CX[b] + 2, T + 2, T + 1)
        a("v_mov_b32 v%d, 0" % (CX[b] + 3))
        if b == 2:
            a("v_mfma_f32_32x32x16_bf16 %s, %s, %s, %s" % (vr(ACC[2], 16), vr(MX, 4), vr(CX[2], 4), vr(ACC[2], 16)))
        else:
            a("v_mfma_f32_32x32x16_bf16 %s, %s, %s, %s" % (vr(ACC[b], 16), vr(CX[b], 4), vr(MX, 4), vr(ACC[b], 16)))
    a("s_waitcnt lgkmcnt(0)")
    a.lg = []
    P = 168
    for r in range(16):
        a("v_mul_f32 v%d, v%d, v%d" % (ACC[2] + r, ACC[2] + r, RR + r))
    for r in range(8):
        a("v_cvt_pk_bf16_f32 v%d, v%d, v%d" % (P + r, ACC[2] + 2 * r, ACC[2] + 2 * r + 1))
    a("buffer_store_dwordx4 %s, v3, s[16:19], s34 offen" % vr(P, 4))
    a("buffer_store_dwordx4 %s, v3, s[16:19], s34 offen offset:512" % vr(P + 4, 4))
    for r in range(16):
        a("v_mul_f32 v%d, v%d, v%d" % (ACC[1] + r, R, ACC[1] + r))
    for r in range(8):
        a("v_cvt_pk_bf16_f32 v%d, v%d, v%d" % (P + 8 + r, ACC[1] + 2 * r, ACC[1] + 2 * r + 1))
    a("buffer_store_dwordx4 %s, v2, s[16:19], s35 offen" % vr(P + 8, 4))
    a("buffer_store_dwordx4 %s, v2, s[16:19], s36 offen" % vr(P + 12, 4))
    a("v_mul_f32 v37, %s, v%d" % (f32hex(0.25 * LOG2E), R))
    for r in range(16):
        a("v_mul_f32 v%d, v37, v%d" % (ACC[0] + r, ACC[0] + r))
    for r in range(8):
        a("v_cvt_pk_bf16_f32 v%d, v%d, v%d" % (P + 16 + r, ACC[0] + 2 * r, ACC[0] + 2 * r + 1))
    a("buffer_store_dwordx4 %s, v2, s[16:19], 0 offen" % vr(P + 16, 4))
    a("buffer_store_dwordx4 %s, v2, s[16:19], s37 offen" % vr(P + 20, 4))
    a("v_mov_b32 v40, 0")
    a("v_mov_b32 v41, 0")
    for r in range(4):
        a("v_dot2c_f32_bf16 v40, v%d, v%d" % (P + 8 + r, P + 8 + r))
        a("v_dot2c_f32_bf16 v41, v%d, v%d" % (P + 12 + r, P + 12 + r))
    a("v_permlane32_swap_b32 v40, v41")
    a("v_add_f32 v40, v40, v41")
    for sh in (1, 2, 4, 8):
        a("v_max_f32_dpp v40, v40, v40 row_shr:%d row_mask:0xf bank_mask:0xf bound_ctrl:0" % sh)
    a("v_max_f32_dpp v40, v40, v40 row_bcast:15 row_mask:0xa bank_mask:0xf")
    a("v_lshrrev_b32 v41, 5, v1")
    a("v_lshlrev_b32 v41, 8, v41")
    a("s_lshl_b32 s29, s33, 9")
    a("s_lshl_b32 s32, s23, 2")
    a("s_add_u32 s29, s29, s32")
    a("s_add_u32 s29, s29, %d" % KN)
    a("s_mov_b32 s38, 0x80000000")
    a("s_mov_b32 s39, 0x80000000")
    a("s_mov_b64 exec, s[38:39]")
    a("buffer_store_dword v40, v41, s[16:19], s29 offen")
    stamp(a, 4)
    stamp_store(a, 0, 5)
    a.label("L_k1_end")
    a("s_endpgm")
    return kernel_text("k1_qkv_kernel", a, 192, 102)
```

```python
from common import *

def k2(NW=int(os.environ.get("K2NW", 16)), PRIO=int(os.environ.get("K2PRIO", 1)), PREF=int(os.environ.get("PREF", 1))):
    a = Asm()
    KSP = NW // 8
    NT = 64 // KSP
    NIT = NT // 8
    KL, VL, PL = 0, 65536, 131072
    PW = 32768 // NW
    a("s_cmp_ge_u32 s2, 256")
    a("s_cbranch_scc1 L_k2_end")
    stamp(a, 0)
    a("s_load_dwordx2 s[16:17], s[0:1], 72")
    a("s_load_dwordx2 s[40:41], s[0:1], 16")
    a("s_load_dwordx4 s[44:47], s[0:1], 32")
    a("s_load_dwordx2 s[42:43], s[0:1], 48")
    a("v_and_b32 v1, 63, v0")
    a("v_lshrrev_b32 v2, 6, v0")
    a("s_and_b32 s21, s2, 31")
    a("s_lshr_b32 s22, s2, 5")
    a("v_readfirstlane_b32 s20, v2")
    a("v_lshlrev_b32 v2, 4, v1")
    a("s_lshl_b32 s23, s21, 16")
    a("s_and_b32 s64, s20, 7")
    a("s_lshr_b32 s65, s20, 3")
    a("s_lshl_b32 s66, s65, 15")
    a("s_lshl_b32 s24, s64, 10")
    a("s_add_u32 s24, s24, s66")
    a("s_add_u32 s25, s23, s24")
    a("s_lshl_b32 s26, s22, 3")
    a("s_add_u32 s26, s26, s64")
    a("s_lshl_b32 s27, s26, 10")
    a("s_add_u32 s27, s27, s23")
    a("s_mov_b32 s18, 0x%x" % WS_BYTES)
    a("s_mov_b32 s19, 0x00020000")
    a("v_add_u32 v3, s25, v2")
    a("s_lshl_b32 s28, s21, 8")
    a("s_add_u32 s28, s28, %d" % KN)
    a("v_lshlrev_b32 v4, 2, v1")
    a("s_waitcnt lgkmcnt(0)")
    Q, NM, S, P, O, KFR, VFR = 8, 16, [32, 48], 64, 72, [88, 92], [96, 104]
    def kv_dma(c):
        a("s_add_u32 m0, s24, %d" % (KL + c * 8192))
        a("s_mov_b32 s29, %d" % (KF + c * 8192))
        a("buffer_load_dwordx4 v3, s[16:19], s29 offen lds", tag=("kv", c))
        a("s_add_u32 m0, s24, %d" % (VL + c * 8192))
        a("s_mov_b32 s29, %d" % (VF + c * 8192))
        a("buffer_load_dwordx4 v3, s[16:19], s29 offen lds", tag=("kv", c))
    a("buffer_load_dwordx4 %s, v2, s[16:19], s27 offen" % vr(Q, 4), tag="q")
    a("buffer_load_dword v5, v4, s[16:19], s28 offen", tag="q")
    kv_dma(0)
    a("v_mov_b32 v6, 0x3f803f80")
    for b in range(2):
        for r in range(8):
            a("v_mov_b32 v%d, v6" % (VFR[b] + r))
    a("s_mov_b32 s60, 0x0000ffff")
    a("s_mov_b32 s61, 0x0000ffff")
    a("v_lshrrev_b32 v6, 5, v1")
    a("v_lshlrev_b32 v6, 8, v6")
    a("v_and_b32 v7, 15, v1")
    a("v_lshl_add_u32 v6, v7, 4, v6")
    a("v_add_u32 v6, %d, v6" % VL)
    a("v_add_u32 v6, s66, v6")
    a("v_add_u32 v7, s66, v2")
    for r in range(16):
        a("v_mov_b32 v%d, 0" % (O + r))
    for r in range(4, 8):
        a("v_mov_b32 v%d, 0" % (P + r))
    a("s_lshl_b32 s30, s64, 12")
    a("s_add_u32 s30, s30, %d" % PL)
    a("v_lshrrev_b32 v116, 3, v1")
    a("v_and_b32 v117, 7, v1")
    a("v_lshlrev_b32 v117, 4, v117")
    a("v_bfe_u32 v112, v1, 2, 2")
    a("v_lshrrev_b32 v113, 5, v1")
    a("v_lshl_add_u32 v112, v113, 2, v112")
    a("v_lshlrev_b32 v112, 7, v112")
    a("v_and_b32 v113, 3, v1")
    a("v_lshl_add_u32 v112, v113, 3, v112")
    a("v_add_u32 v112, s30, v112")
    a("v_bfe_u32 v113, v1, 4, 1")
    a("s_sub_u32 s38, s2, 72")
    a("s_cmp_ge_u32 s2, 184")
    a("s_cselect_b32 s38, s38, s2")
    a("s_cmp_ge_u32 s2, 112")
    a("s_cbranch_scc1 L_k2_prep_plain")
    a("s_lshr_b32 s31, s2, 2")
    a("s_and_b32 s32, s2, 3")
    a("s_lshl_b32 s32, s32, 3")
    a("s_add_u32 s32, s32, s64")
    a("s_mul_i32 s33, s32, %d" % (16 * 3584))
    a("s_lshl_b32 s34, s31, 7")
    a("s_add_u32 s68, s33, s34")
    a("s_add_u32 s69, s68, %d" % (8 * 3584))
    a("s_mov_b32 s70, s68")
    a("s_mov_b32 s71, s69")
    a("v_mul_u32_u24 v116, 3584, v116")
    a("v_add_u32 v116, v116, v117")
    a("s_mov_b32 s48, s44")
    a("s_mov_b32 s49, s45")
    a("s_mov_b32 s50, %d" % (512 * 3584))
    a("s_mov_b32 s51, 0x00020000")
    a("s_mov_b32 s52, s46")
    a("s_mov_b32 s53, s47")
    a("s_mov_b32 s54, %d" % (512 * 3584))
    a("s_mov_b32 s55, 0x00020000")
    a("v_lshl_add_u32 v112, v113, 11, v112")
    a("v_add_u32 v113, 32, v112")
    a("v_add_u32 v114, 64, v112")
    a("v_add_u32 v115, 96, v112")
    a("s_lshl_b32 s33, s31, 17")
    a("s_lshl_b32 s34, s32, 10")
    a("s_add_u32 s33, s33, s34")
    a("s_add_u32 s56, s33, %d" % WGUF)
    a("s_add_u32 s57, s56, 32768")
    a("s_add_u32 s58, s56, 65536")
    a("s_add_u32 s59, s56, 98304")
    a("s_branch L_k2_prep_done")
    a.label("L_k2_prep_plain")
    a("s_cmp_ge_u32 s38, 128")
    a("s_cselect_b32 s48, s42, s40")
    a("s_cselect_b32 s49, s43, s41")
    a("s_mov_b32 s50, %d" % (512 * 1024))
    a("s_cselect_b32 s50, %d, s50" % (1792 * 1024))
    a("s_mov_b32 s51, 0x00020000")
    a("s_mov_b32 s52, s48")
    a("s_mov_b32 s53, s49")
    a("s_mov_b32 s54, s50")
    a("s_mov_b32 s55, 0x00020000")
    a("s_mov_b32 s31, 112")
    a("s_cselect_b32 s31, 128, s31")
    a("s_mov_b32 s35, %d" % WDF)
    a("s_mov_b32 s36, %d" % WOF)
    a("s_cselect_b32 s35, s35, s36")
    a("s_cselect_b32 s36, 112, 32")
    a("s_sub_u32 s31, s38, s31")
    a("s_and_b32 s32, s31, 7")
    a("s_lshr_b32 s31, s31, 3")
    a("s_lshl_b32 s31, s31, 4")
    a("s_lshl_b32 s33, s64, 1")
    a("s_add_u32 s31, s31, s33")
    a("s_lshl_b32 s33, s31, 14")
    a("s_lshl_b32 s34, s32, 7")
    a("s_add_u32 s68, s33, s34")
    a("s_add_u32 s69, s68, 8192")
    a("s_add_u32 s70, s68, 16384")
    a("s_add_u32 s71, s68, 24576")
    a("v_lshl_add_u32 v116, v116, 10, v117")
    a("v_lshl_add_u32 v112, v113, 5, v112")
    a("v_add_u32 v113, 64, v112")
    a("v_add_u32 v114, 2048, v112")
    a("v_add_u32 v115, 2112, v112")
    a("s_lshl_b32 s32, s32, 1")
    a("s_mul_i32 s32, s32, s36")
    a("s_add_u32 s32, s32, s31")
    a("s_lshl_b32 s32, s32, 10")
    a("s_add_u32 s56, s35, s32")
    a("s_lshl_b32 s36, s36, 10")
    a("s_add_u32 s57, s56, s36")
    a("s_add_u32 s58, s56, 1024")
    a("s_add_u32 s59, s57, 1024")
    a.label("L_k2_prep_done")
    a.wait_vm("q")
    a("v_mov_b32 v12, 0")
    for r in range(4):
        a("v_dot2c_f32_bf16 v12, v%d, v%d" % (Q + r, Q + r))
    for sh in (1, 2, 4, 8):
        a("v_max_f32_dpp v5, v5, v5 row_shr:%d row_mask:0xf bank_mask:0xf bound_ctrl:0" % sh)
    a("v_max_f32_dpp v5, v5, v5 row_bcast:15 row_mask:0xa bank_mask:0xf")
    a("v_max_f32_dpp v5, v5, v5 row_bcast:31 row_mask:0xc bank_mask:0xf")
    a("v_mov_b32 v13, v12")
    a("v_permlane32_swap_b32 v12, v13")
    a("v_add_f32 v12, v12, v13")
    a("v_readlane_b32 s62, v5, 63")
    a("v_mul_f32 v12, s62, v12")
    a("v_sqrt_f32 v12, v12")
    a("v_mul_f32 v%d, %s, v12" % (NM, f32hex(-1.01)))
    for r in range(1, 16):
        a("v_mov_b32 v%d, v%d" % (NM + r, NM))
    stamp(a, 1)
    a.wait_vm(("kv", 0))
    a("s_barrier")
    stamp(a, 2)
    if STAMP: a.wait_lg0()

    def k_read(t, off):
        a("ds_read_b128 %s, v7 offset:%d" % (vr(KFR[t % 2], 4), KL + off * 1024))
    def v_read(t, off):
        a("s_mov_b64 exec, s[60:61]")
        a("ds_read_b128 %s, v6 offset:%d" % (vr(VFR[t % 2], 4), off * 1024))
        a("ds_read_b128 %s, v6 offset:%d" % (vr(VFR[t % 2] + 4, 4), off * 1024 + 512))
        a("s_mov_b64 exec, -1")
    def qk(t):
        a("v_mfma_f32_32x32x16_bf16 %s, %s, %s, %s" % (vr(S[t % 2], 16), vr(KFR[t % 2], 4), vr(Q, 4), vr(NM, 16)))
    def pv(t, mm):
        a("v_mfma_f32_32x32x16_bf16 %s, %s, %s, %s" % (vr(O, 16), vr(VFR[t % 2] + 4 * mm, 4), vr(P + 4 * mm, 4), vr(O, 16)))
    k_read(0, 0)
    k_read(1, 1)
    v_read(0, 0)
    a("s_mov_b32 s63, 1")
    if PRIO: a("s_setprio 3")
    a("s_waitcnt lgkmcnt(3)")
    qk(0)
    for c in range(1, NIT):
        kv_dma(c)
    def prep_ld(i):
        a("s_add_u32 m0, s30, %d" % (i * 1024))
        a("s_nop 0")
        a("buffer_load_dwordx4 v116, s[%d:%d], s%d offen lds" % ((48, 51, 68 + i) if i < 2 else (52, 55, 68 + i)))
    if KSP == 2:
        a("s_cmp_eq_u32 s65, 0")
        a("s_cbranch_scc1 L_k2_noprepld")
    for i in range(4):
        prep_ld(i)
    a.label("L_k2_noprepld")
    a("s_nop 3")
    def body(peel):
        for t in range(8):
            s = S[t % 2]
            def e(i): a("v_exp_f32 v%d, v%d" % (s + i, s + i))
            def c(i): a("v_cvt_pk_bf16_f32 v%d, v%d, v%d" % (P + i, s + 2 * i, s + 2 * i + 1))
            a("s_waitcnt lgkmcnt(0)")
            qk(t + 1)
            if t == 6:
                if peel:
                    stamp(a, 5)
                    a("s_branch L_k2_b1")
                    a.label("L_k2_b1_back")
                    stamp(a, 6)
                    a("s_barrier")
                    if PRIO: a("s_setprio 3")
                    stamp(a, 7)

                else:
                    a("s_branch L_k2_sync")
                    a.label("L_k2_sync_back")
            k_read(t + 2, t + 2)
            e(0); e(1); e(2); c(0); e(3)
            pv(t - 1, 1)
            v_read(t + 1, t + 1)
            e(4); c(1); e(5); e(6); c(2); e(7); e(8); c(3); e(9); e(10)
            pv(t, 0)
            if peel and PRIO and t in (2, 4):
                a("s_setprio %d" % (2 if t == 2 else 1))
            c(4); e(11); e(12); c(5); e(13); e(14); e(15); c(6)
            if t == 7:
                a("v_add_u32 v7, 8192, v7")
                a("v_add_u32 v6, 8192, v6")
                if not peel:
                    a("s_add_u32 s63, s63, 1")
            c(7)
    body(True)
    stamp(a, 9)
    a.raw(".p2align 6")
    a.label("L_k2_loop")
    body(False)
    a("s_cmp_lt_u32 s63, %d" % NIT)
    a("s_cbranch_scc1 L_k2_loop")
    a("s_nop 1")
    pv(7, 1)
    stamp(a, 3)
    L = O + 8
    if KSP == 2:
        a("s_waitcnt lgkmcnt(0)")
        a("v_add_u32 v12, s30, v2")
        a("s_cmp_eq_u32 s65, 0")
        a("s_cbranch_scc1 L_k2_low")
        a("s_nop 15")
        for q in range(3):
            a("ds_write_b128 v12, %s offset:%d" % (vr(O + 4 * q, 4), q * 1024))
        a("s_waitcnt lgkmcnt(0)")
        a("s_barrier")
        a("s_branch L_k2_hi_end")
        a.label("L_k2_low")
        a("s_barrier")
        for q in range(3):
            a("ds_read_b128 %s, v12 offset:%d" % (vr(S[0] + 4 * q, 4), q * 1024))
        a("s_waitcnt lgkmcnt(0)")
        for r in range(9):
            a("v_add_f32 v%d, v%d, v%d" % (O + r, O + r, S[0] + r))
    else:
        a("s_nop 15")
    a("v_cmp_nle_f32 vcc, %s, v%d" % (f32hex(2.0 ** -64), L))
    a("s_nop 4")
    a("s_cbranch_vccnz L_k2_fallback")
    a.label("L_k2_fin")
    a("v_rcp_f32 v12, v%d" % L)
    for r in range(8):
        a("v_mul_f32 v%d, v%d, v12" % (O + r, O + r))
    for r in range(4):
        a("v_cvt_pk_bf16_f32 v%d, v%d, v%d" % (P + r, O + 2 * r, O + 2 * r + 1))
    a("s_lshl_b32 s29, s26, 15")
    a("s_lshl_b32 s30, s21, 10")
    a("s_add_u32 s29, s29, s30")
    a("s_add_u32 s29, s29, %d" % OF)
    a("buffer_store_dwordx4 %s, v2, s[16:19], s29 offen" % vr(P, 4))
    a.label("L_k2_hi_end")
    stamp(a, 4)
    if STAMP:
        a("s_cmp_ge_u32 s20, 8")
        a("s_cselect_b32 s20, 7, s20")
    stamp_store(a, 1, 10)
    a.label("L_k2_end")
    a("s_endpgm")
    a.label("L_k2_sync")
    if PRIO:
        lv = {NIT - 1: 0, NIT - 2: 1, NIT - 3 if NIT == 4 else NIT - 4: 2}
        for it, p in lv.items():
            a("s_cmp_eq_u32 s63, %d" % it)
            a("s_cbranch_scc0 L_k2_pr%d" % it)
            if p == 0 and KSP == 2:
                a("s_cmp_eq_u32 s65, 0")
                a("s_cbranch_scc0 L_k2_pr%d" % it)
            a("s_setprio %d" % p)
            a.label("L_k2_pr%d" % it)
    a("s_cmp_eq_u32 s63, %d" % (NIT // 2))
    a("s_cbranch_scc1 L_k2_pref")
    a("s_cmp_eq_u32 s63, %d" % (NIT // 4))
    a("s_cbranch_scc0 L_k2_sync_back")
    a.label("L_k2_sync1")
    if KSP == 2:
        a("s_cmp_eq_u32 s65, 0")
        a("s_cbranch_scc1 L_k2_sync_back")
    a("s_waitcnt vmcnt(0)")
    T = 120
    for half in range(2):
        for q in range(2):
            for t in range(2):
                a("ds_read_b64_tr_b16 %s, v%d offset:%d" % (vr(T + 4 * q + 2 * t, 2), 112 + 2 * half + q, t * 1024))
        a("s_waitcnt lgkmcnt(0)")
        for q in range(2):
            a("buffer_store_dwordx4 %s, v2, s[16:19], s%d offen sc1" % (vr(T + 4 * q, 4), 56 + 2 * half + q))
        a("s_nop 1")
    a("s_branch L_k2_sync_back")
    a.label("L_k2_b1")
    a("s_cmp_eq_u32 s65, 0")
    a("s_cbranch_scc1 L_k2_b1l")
    a("s_waitcnt vmcnt(4)")
    a("s_branch L_k2_b1_back")
    a.label("L_k2_b1l")
    a("s_waitcnt vmcnt(0)")
    a("s_branch L_k2_b1_back")
    assert NW == 16
    a.label("L_k2_pref")
    if PREF:
        a("s_lshr_b32 s31, s2, 3")
        a("s_lshl_b32 s32, s31, 14")
        a("s_lshl_b32 s33, s20, 10")
        a("s_add_u32 s32, s32, s33")
        a("s_add_u32 s32, s32, %d" % WOF)
        a("buffer_load_dwordx4 v[120:123], v2, s[16:19], s32 offen")
        a("s_and_b32 s32, s2, 1")
        a("s_mul_i32 s32, s32, %d" % (56 * 32768))
        a("s_mul_i32 s31, s31, 57344")
        a("s_add_u32 s32, s32, s31")
        a("s_add_u32 s67, s32, %d" % WGUF)
        a("s_add_u32 s32, s67, s33")
        a("buffer_load_dwordx4 v[124:127], v2, s[16:19], s32 offen")
        a("s_min_u32 s33, s33, 7168")
        a("s_add_u32 s32, s67, s33")
        a("s_add_u32 s32, s32, 16384")
        a("buffer_load_dwordx4 v[124:127], v2, s[16:19], s32 offen")
    if PREF:
        a("s_lshl_b32 s33, s20, 11")
        a("s_add_u32 s32, s67, s33")
        a("s_add_u32 s32, s32, 24576")
        a("buffer_load_dwordx4 v[120:123], v2, s[16:19], s32 offen")
        a("buffer_load_dwordx4 v[124:127], v2, s[16:19], s32 offen offset:1024")
    if TOUCH:
        a("s_lshl_b32 s32, s26, 15")
        a("s_lshl_b32 s33, s21, 10")
        a("s_add_u32 s32, s32, s33")
        a("s_add_u32 s32, s32, %d" % OF)
        a("buffer_load_dword v120, v4, s[16:19], s32 offen")
    if CODEPF:
        a("s_cmp_ge_u32 s2, 16")
        a("s_cbranch_scc1 L_k2_sync_back")
        code_prefetch(a, "k3_wo_kernel", 32, 120, "v2", per_wave=2, sbase=48, s_off="s32")
    a("s_branch L_k2_sync_back")
    a.label("L_k2_fallback")
    a("v_mov_b32 v7, v2")
    a("v_mov_b32 v12, 0xff800000")
    a("s_mov_b32 s63, 0")
    a.label("L_k2_fb_loop")
    a("ds_read_b128 %s, v7" % vr(KFR[0], 4))
    a("v_add_u32 v7, 1024, v7")
    a("s_waitcnt lgkmcnt(0)")
    a("v_mfma_f32_32x32x16_bf16 %s, %s, %s, 0" % (vr(S[0], 16), vr(KFR[0], 4), vr(Q, 4)))
    for r in range(0, 16, 2):
        a("v_max3_f32 v12, v12, v%d, v%d" % (S[0] + r, S[0] + r + 1))
    a("s_add_u32 s63, s63, 1")
    a("s_cmp_lt_u32 s63, 64")
    a("s_cbranch_scc1 L_k2_fb_loop")
    a("v_mov_b32 v13, v12")
    a("v_permlane32_swap_b32 v12, v13")
    a("v_max_f32 v12, v12, v13")
    a("v_sub_f32 v12, 0, v12")
    for r in range(16):
        a("v_mov_b32 v%d, v12" % (NM + r))
    for r in range(16):
        a("v_mov_b32 v%d, 0" % (O + r))
    a("v_mov_b32 v7, v2")
    a("v_subrev_u32 v6, %d, v6" % (NT * 1024))
    a("s_mov_b32 s63, 0")
    a.label("L_k2_fb2_loop")
    a("ds_read_b128 %s, v7" % vr(KFR[0], 4))
    v_read(0, 0)
    a("v_add_u32 v7, 1024, v7")
    a("v_add_u32 v6, 1024, v6")
    a("s_waitcnt lgkmcnt(0)")
    qk(0)
    for r in range(16):
        a("v_exp_f32 v%d, v%d" % (S[0] + r, S[0] + r))
    for r in range(8):
        a("v_cvt_pk_bf16_f32 v%d, v%d, v%d" % (P + r, S[0] + 2 * r, S[0] + 2 * r + 1))
    pv(0, 0)
    pv(0, 1)
    a("s_add_u32 s63, s63, 1")
    a("s_cmp_lt_u32 s63, 64")
    a("s_cbranch_scc1 L_k2_fb2_loop")
    a("s_nop 15")
    a("s_branch L_k2_fin")
    return kernel_text("k2_attn_kernel", a, 128, 102), NW * 64
```

```python
from common import *
from k4 import split3, pack2

def k35(which, ROT=int(os.environ.get("K35ROT", 1))):
    a = Asm()
    nm = "k%d" % which
    KS = 32 if which == 3 else 112
    KW = KS // 4
    BBASE = OF if which == 3 else AF
    ABASE = WOF if which == 3 else WDF
    a("s_cmp_ge_u32 s2, %d" % (284 if which == 3 else 256))
    a("s_cbranch_scc1 L_%s_end" % nm)
    stamp(a, 0)
    a("s_load_dwordx2 s[16:17], s[0:1], 72")
    a("s_load_dwordx2 s[8:9], s[0:1], %d" % (0 if which == 3 else 56))
    a("v_and_b32 v1, 63, v0")
    a("v_lshrrev_b32 v2, 6, v0")
    a("s_mov_b32 s18, 0x%x" % WS_BYTES)
    a("s_mov_b32 s19, 0x00020000")
    a("v_readfirstlane_b32 s20, v2")
    a("v_lshlrev_b32 v2, 4, v1")
    a("s_mov_b32 s10, 0x200000")
    a("s_mov_b32 s11, 0x00020000")
    if which == 3:
        a("s_cmp_ge_u32 s2, 256")
        a("s_cbranch_scc1 L_k3_colsum")
    if which == 3 or K5MAP == 8:
        a("s_and_b32 s21, s2, 7")
        a("s_lshl_b32 s21, s21, 2")
        a("s_lshr_b32 s22, s2, 3")
        a("s_and_b32 s22, s22, 3")
        a("s_add_u32 s21, s21, s22")
        a("s_lshr_b32 s22, s2, 5")
        a("s_min_u32 s31, s22, %d" % (7 if which == 3 else 6))
    else:
        a("s_and_b32 s21, s2, 6")
        a("s_lshl_b32 s21, s21, 2")
        a("s_lshr_b32 s22, s2, 3")
        a("s_and_b32 s22, s22, 7")
        a("s_add_u32 s21, s21, s22")
        a("s_and_b32 s22, s2, 1")
        a("s_lshl_b32 s22, s22, 2")
        a("s_lshr_b32 s31, s2, 6")
        a("s_add_u32 s22, s22, s31")
        a("s_lshl_b32 s31, s31, 1")
    a("s_and_b32 s27, s20, 1")
    a("s_lshr_b32 s28, s20, 1")
    a("s_lshl_b32 s29, s22, 1")
    a("s_add_u32 s27, s27, s29")
    a("s_lshl_b32 s29, s21, 1")
    a("s_add_u32 s28, s28, s29")
    a("s_mul_i32 s24, s20, %d" % (KW * 1024))
    a("v_add_u32 v3, s24, v2")
    a("s_mul_i32 s23, s27, %d" % (KS * 1024))
    a("s_add_u32 s23, s23, %d" % ABASE)
    a("v_add_u32 v4, s23, v3")
    a("s_xor_b32 s23, s27, 1")
    a("s_mul_i32 s23, s23, %d" % (KS * 1024))
    a("s_add_u32 s23, s23, %d" % ABASE)
    a("v_add_u32 v5, s23, v3")
    a("s_mul_i32 s23, s28, %d" % (KS * 1024))
    a("s_add_u32 s23, s23, %d" % BBASE)
    a("v_add_u32 v6, s23, v3")
    a("s_xor_b32 s23, s28, 1")
    a("s_mul_i32 s23, s23, %d" % (KS * 1024))
    a("s_add_u32 s23, s23, %d" % BBASE)
    a("v_add_u32 v7, s23, v3")
    WIN = min(KW, 13)
    OWN = 16
    RES = 32
    XA = 40
    FB = 44
    def frag(i, j):
        return FB + ((i % WIN) * 4 + j) * 4
    G = 4 if which == 5 else 1
    NG = KW // G
    if ROT:
        a("s_lshl_b32 s25, s31, %d" % (10 + (2 if G == 4 else 0)))
    else:
        a("s_mov_b32 s25, 0")
    for g in range(NG):
        a("s_add_u32 s%d, s25, %d" % (40 + g, g * G * 1024))
        a("s_cmp_ge_u32 s%d, %d" % (40 + g, KW * 1024))
        a("s_cselect_b32 s26, %d, 0" % (KW * 1024))
        a("s_sub_u32 s%d, s%d, s26" % (40 + g, 40 + g))
    a("s_waitcnt lgkmcnt(0)")
    def loads(i):
        for j in (2, 0, 1, 3):
            a("buffer_load_dwordx4 %s, v%d, s[16:19], s%d offen offset:%d" % (vr(frag(i, j), 4), 4 + j, 40 + i // G, (i % G) * 1024), tag=("f", i))
    def res_loads():
        if which == 3:
            a("v_lshrrev_b32 v8, 3, v1")
            a("v_lshlrev_b32 v8, 10, v8")
            a("v_and_b32 v9, 7, v1")
            a("v_lshrrev_b32 v14, 4, v1")
            a("v_xor_b32 v9, v9, v14")
            a("v_lshl_add_u32 v14, v9, 4, v8")
            a("v_xor_b32 v9, 4, v9")
            a("v_lshl_add_u32 v15, v9, 4, v8")
            a("s_lshl_b32 s29, s21, 16")
            a("s_lshl_b32 s30, s20, 14")
            a("s_add_u32 s29, s29, s30")
            a("s_lshl_b32 s30, s22, 7")
            a("s_add_u32 s29, s29, s30")
            a("s_lshl_b32 s30, s20, 11")
            a("s_add_u32 m0, s30, 49152")
            a("s_add_u32 s32, s29, 8192")
            a("buffer_load_dwordx4 v14, s[8:11], s29 offen lds", tag="res")
            a("s_add_u32 m0, s30, %d" % (49152 + 1024))
            a("s_nop 0")
            a("buffer_load_dwordx4 v15, s[8:11], s32 offen lds", tag="res")
            a("v_and_b32 v8, 31, v1")
            a("v_bfe_u32 v9, v8, 1, 3")
            a("s_and_b32 s30, s20, 1")
            a("s_lshl_b32 s30, s30, 2")
            a("v_xor_b32 v9, s30, v9")
            a("v_lshlrev_b32 v8, 7, v8")
            a("v_lshrrev_b32 v14, 5, v1")
            a("v_lshl_add_u32 v8, v14, 3, v8")
            a("s_lshr_b32 s30, s20, 1")
            a("s_lshl_b32 s30, s30, 12")
            a("s_add_u32 s30, s30, 49152")
            a("v_add_u32 v8, s30, v8")
            for g in range(4):
                a("v_xor_b32 v14, %d, v9" % g)
                a("v_lshl_add_u32 v%d, v14, 4, v8" % (XA + g))
        else:
            a("s_lshl_b32 s29, s28, 15")
            a("s_lshl_b32 s30, s27, 11")
            a("s_add_u32 s29, s29, s30")
            a("s_add_u32 s29, s29, %d" % HF)
            a("buffer_load_dwordx4 %s, v2, s[16:19], s29 offen" % vr(RES, 4), tag="res")
            a("buffer_load_dwordx4 %s, v2, s[16:19], s29 offen offset:1024" % vr(RES + 4, 4), tag="res")
    NPRE = min(WIN, 6)
    for i in range(NPRE):
        loads(i)
    if which == 3:
        res_loads()
    if TOUCH:
        a("v_mov_b32 v14, 0")
        a("s_lshl_b32 s29, s28, 15")
        if which == 3:
            a("s_lshl_b32 s30, s27, 11")
            a("s_add_u32 s29, s29, s30")
            a("s_add_u32 s29, s29, %d" % HF)
            a("buffer_load_dword v15, v14, s[16:19], s29 offen", tag="touch")
            a("s_lshl_b32 s29, s28, 12")
            a("s_add_u32 s29, s29, %d" % ST)
            a("buffer_load_dword v15, v14, s[16:19], s29 offen", tag="touch")
        else:
            a("s_lshl_b32 s30, s27, 6")
            a("s_add_u32 s29, s29, s30")
            a("buffer_load_dword v15, v14, s[8:11], s29 offen", tag="touch")
    for j in range(1, 4):
        a("s_xor_b32 s29, s20, %d" % j)
        a("s_mul_i32 s29, s29, 12288")
        a("s_add_u32 s29, s29, %d" % ((j - 1) * 4096))
        a("v_add_u32 v%d, s29, v2" % (9 + j))
    a("s_mul_i32 s29, s20, 12288")
    a("v_add_u32 v13, s29, v2")
    def accr(j):
        return vr(OWN, 16) if j == 0 else ar(16 * (j - 1), 16)
    stamp(a, 1)
    nxt = NPRE
    for i in range(KW):
        a.wait_vm(("f", i))
        if i == 0: stamp(a, 2)
        order = (1, 2, 3, 0)
        for j in order:
            an, bt = j & 1, j >> 1
            a("v_mfma_f32_32x32x16_bf16 %s, %s, %s, %s" % (accr(j), vr(frag(i, an), 4), vr(frag(i, 2 + bt), 4), "0" if i == 0 else accr(j)))
        cnt = 0
        while nxt < KW and nxt < i + 1 + WIN and cnt < 2:
            loads(nxt); nxt += 1; cnt += 1
            if nxt == KW and which == 5:
                res_loads()
    stamp(a, 3)
    for j in range(1, 4):
        for q in range(4):
            a("ds_write_b128 v%d, %s offset:%d" % (9 + j, ar(16 * (j - 1) + 4 * q, 4), q * 1024))
    a.wait_vm("res")
    U = FB + 48
    def unpack():
        for r in range(8):
            a("v_lshlrev_b32 v%d, 16, v%d" % (U + 2 * r, RES + r))
            a("v_and_b32 v%d, 0xffff0000, v%d" % (U + 2 * r + 1, RES + r))
        for r in range(16):
            a("v_add_f32 v%d, v%d, v%d" % (U + r, U + r, OWN + r))
    if which == 5:
        unpack()
    a.wait_lg0()
    a("s_barrier")
    if which == 3:
        for g in range(4):
            a("ds_read_b64 %s, v%d" % (vr(RES + 2 * g, 2), XA + g), tag="xr")
    R = FB
    for q in range(4):
        for src in range(3):
            a("ds_read_b128 %s, v13 offset:%d" % (vr(R + src * 16 + 4 * q, 4), src * 4096 + q * 1024), tag=("rd", q))
    Pk = U + 16
    if which == 3:
        a("s_lshl_b32 s29, s28, 15")
        a("s_lshl_b32 s30, s27, 11")
        a("s_add_u32 s29, s29, s30")
        a("s_add_u32 s29, s29, %d" % HF)
        a("v_mov_b32 v10, 0")
        a("v_mov_b32 v11, 0")
        a("v_mov_b32 v12, 0x3f803f80")
        a("s_lshr_b32 s31, s27, 2")
        a("s_lshl_b32 s31, s31, 10")
        a("s_and_b32 s30, s27, 3")
        a("s_lshl_b32 s30, s30, 2")
        a("s_add_u32 s31, s31, s30")
        a("s_lshl_b32 s30, s28, 12")
        a("s_add_u32 s31, s31, s30")
        a("s_add_u32 s31, s31, %d" % ST)
    else:
        a("v_and_b32 v8, 31, v1")
        a("v_lshlrev_b32 v8, 10, v8")
        a("v_lshrrev_b32 v9, 5, v1")
        a("v_lshl_add_u32 v8, v9, 4, v8")
        a("s_lshl_b32 s29, s28, 15")
        a("s_lshl_b32 s30, s27, 6")
        a("s_add_u32 s29, s29, s30")
    if which == 3:
        a.wait_lg("xr")
        unpack()
    for q in range(4):
        a.wait_lg(("rd", q))
        for e in range(4):
            r = 4 * q + e
            a("v_add_f32 v%d, v%d, v%d" % (R + r, R + r, R + 16 + r))
            a("v_add_f32 v%d, v%d, v%d" % (U + r, U + r, R + 32 + r))
        for e in range(4):
            r = 4 * q + e
            a("v_add_f32 v%d, v%d, v%d" % (U + r, U + r, R + r))
        for r in (2 * q, 2 * q + 1):
            a("v_cvt_pk_bf16_f32 v%d, v%d, v%d" % (Pk + r, U + 2 * r, U + 2 * r + 1))
        if q % 2 == 1:
            hb = Pk + 2 * (q - 1)
            if which == 3:
                a("buffer_store_dwordx4 %s, v2, s[16:19], s29 offen offset:%d" % (vr(hb, 4), (q // 2) * 1024))
            else:
                a("v_permlane32_swap_b32 v%d, v%d" % (hb + 0, hb + 2))
                a("v_permlane32_swap_b32 v%d, v%d" % (hb + 1, hb + 3))
                a("buffer_store_dwordx4 %s, v8, s[8:11], s29 offen offset:%d" % (vr(hb, 4), (q // 2) * 32))
    if which == 3:
        for r in range(8):
            a("v_dot2c_f32_bf16 v10, v%d, v12" % (Pk + r))
            a("v_dot2c_f32_bf16 v11, v%d, v%d" % (Pk + r, Pk + r))
        a("v_permlane32_swap_b32 v10, v11")
        a("v_add_f32 v10, v10, v11")
        a("buffer_store_dword v10, v2, s[16:19], s31 offen")
        stamp(a, 4)
        stamp_store(a, 2, 5)
        a("s_endpgm")
        a.label("L_k3_colsum")
        a.vm = []
        a("s_sub_u32 s21, s2, 256")
        a("s_and_b32 s22, s21, 1")
        a("s_mul_i32 s22, s22, 56")
        a("s_lshr_b32 s21, s21, 1")
        a("s_lshl_b32 s21, s21, 2")
        a("s_add_u32 s21, s21, s22")
        a("s_add_u32 s21, s21, s20")
        a("s_lshl_b32 s22, s21, 15")
        a("s_add_u32 s22, s22, %d" % WGUF)
        a("v_add_u32 v4, s22, v2")
        a("v_lshrrev_b32 v8, 4, v1")
        a("v_lshrrev_b32 v9, 2, v1")
        a("v_xor_b32 v8, v8, v9")
        a("v_and_b32 v8, 1, v8")
        a("v_cmp_eq_u32 vcc, 0, v8")
        a("v_mov_b32 v9, 0x3f803f80")
        a("v_cndmask_b32 v8, 0, v9, vcc")
        a("v_mov_b32 v9, v8")
        a("v_mov_b32 v10, v8")
        a("v_mov_b32 v11, v8")
        a("s_waitcnt lgkmcnt(0)")
        for i in range(32):
            if i % 4 == 0:
                a("s_mov_b32 s26, %d" % (i * 1024))
            a("buffer_load_dwordx4 %s, v4, s[16:19], s26 offen offset:%d" % (vr(FB + 4 * i, 4), (i % 4) * 1024), tag=("c", i))
        for i in range(32):
            if i % 4 == 0:
                a.wait_vm(("c", i + 3))
            a("v_mfma_f32_16x16x32_bf16 v[12:15], v[8:11], %s, %s" % (vr(FB + 4 * i, 4), "0" if i == 0 else "v[12:15]"))
        split3(a, 12, 4, 5, 6)
        pack2(a, 8, 4, 4)
        pack2(a, 9, 5, 4)
        pack2(a, 10, 6, 5)
        a("v_mov_b32 v11, 0")
        a("s_mov_b32 exec_lo, 0")
        a("v_mov_b32 v8, 0")
        a("v_mov_b32 v9, 0")
        a("v_mov_b32 v10, 0")
        a("s_mov_b64 exec, -1")
        a("s_lshl_b32 s22, s21, 10")
        a("s_add_u32 s22, s22, %d" % CS)
        a("buffer_store_dwordx4 v[8:11], v2, s[16:19], s22 offen")
    else:
        stamp(a, 4)
        stamp_store(a, 4, 5)
    a.label("L_%s_end" % nm)
    a("s_endpgm")
    nv = max(FB + WIN * 16, Pk + 8, FB + 128 if which == 3 else 0)
    nv = (nv + 3) // 4 * 4
    name = "k3_wo_kernel" if which == 3 else "k5_down_kernel"
    return kernel_text(name, a, nv, 102, accum=nv, nagpr=48)
```

```python
from common import *

def split3(a, src, hi, mid, lo):
    a("v_and_b32 v%d, 0xffff0000, v%d" % (hi, src))
    a("v_sub_f32 v%d, v%d, v%d" % (lo, src, hi))
    a("v_and_b32 v%d, 0xffff0000, v%d" % (mid, lo))
    a("v_sub_f32 v%d, v%d, v%d" % (lo, lo, mid))
    a("v_and_b32 v%d, 0xffff0000, v%d" % (lo, lo))
def pack2(a, dst, e_lo, e_hi):
    a("v_lshrrev_b32 v%d, 16, v%d" % (dst, e_lo))
    a("v_or_b32 v%d, v%d, v%d" % (dst, dst, e_hi))

def k4(NA=int(os.environ.get("K4NA", 4)), PD=int(os.environ.get("K4PD", 2)), ROT=int(os.environ.get("K4ROT", 1)), PREF=int(os.environ.get("PREF", 1))):
    a = Asm()
    NB = 7 - NA
    a("s_cmp_ge_u32 s2, 256")
    a("s_cbranch_scc1 L_k4_end")
    stamp(a, 0)
    a("s_load_dwordx2 s[16:17], s[0:1], 72")
    a("v_and_b32 v1, 63, v0")
    a("v_lshrrev_b32 v2, 6, v0")
    a("s_mov_b32 s18, 0x%x" % WS_BYTES)
    a("s_mov_b32 s19, 0x00020000")
    a("v_readfirstlane_b32 s20, v2")
    a("v_lshlrev_b32 v2, 4, v1")
    a("s_lshr_b32 s33, s2, 3")
    a("s_and_b32 s21, s2, 6")
    a("s_lshl_b32 s21, s21, 1")
    a("s_and_b32 s34, s33, 3")
    a("s_add_u32 s21, s21, s34")
    a("s_and_b32 s22, s2, 1")
    a("s_lshl_b32 s22, s22, 3")
    a("s_lshr_b32 s35, s33, 2")
    a("s_add_u32 s22, s22, s35")
    a("s_lshl_b32 s34, s35, 12")
    if ROT == 0: a("s_mov_b32 s34, 0")
    a("s_lshl_b32 s23, s21, 2")
    a("s_add_u32 s23, s23, s20")
    a("s_lshl_b32 s24, s23, 15")
    a("s_add_u32 s24, s24, %d" % HF)
    a("v_add_u32 v3, s24, v2")
    a("s_mul_i32 s25, s22, %d" % (7 * 32768))
    a("s_lshl_b32 s26, s20, 10")
    a("s_add_u32 s25, s25, %d" % WGUF)
    a("v_add_u32 v4, s25, v2")
    a("v_add_u32 v5, s26, v4")
    for c in range(8):
        a("s_add_u32 s%d, s34, %d" % (40 + c, c * 4096))
        a("s_and_b32 s%d, s%d, 0x7fff" % (40 + c, 40 + c))
    a("s_waitcnt lgkmcnt(0)")
    stamp(a, 9)
    HB = 8
    ACC = 136
    ACC = 16
    WB = 128
    NWB = 8
    E = 160
    PKR = 168
    STR = 176
    BX = 192
    MU, RS, C1, KK = 196, 197, 198, 199
    T0 = 200
    SLOTA = NA * 4096
    EXT = 0
    RING = 8192
    SLOT = max(SLOTA, 16384)
    NSLOT = (163840 - RING) // SLOT
    chunks = [("A", c) for c in range(8)] + [("B", b, hh) for b in range(NA, 7) for hh in range(2)]
    def chunk_vmem(j):
        ops = []
        ch = chunks[j]
        base = RING + (j % NSLOT) * SLOT
        if ch[0] == "A":
            c = ch[1]
            for i in range(max(4, NA)):
                if i < 4:
                    def f(i=i, c=c):
                        a("buffer_load_dwordx4 %s, v3, s[16:19], s%d offen offset:%d" % (ar((4 * c + i) * 4, 4), 40 + c, i * 1024), tag=("c", j))
                    ops.append(f)
                if i < NA:
                    def f(b=i, c=c):
                        a("s_add_u32 m0, s26, %d" % (base + b * 4096))
                        a("s_add_u32 s27, s%d, %d" % (40 + c, b * 32768))
                        a("buffer_load_dwordx4 v5, s[16:19], s27 offen lds", tag=("c", j))
                    ops.append(f)
        else:
            b, hh = ch[1], ch[2]
            for q in range(4):
                def f(q=q, b=b, hh=hh):
                    a("s_add_u32 m0, s26, %d" % (base + q * 4096))
                    a("s_add_u32 s27, s%d, %d" % (40 + 4 * hh + q, b * 32768))
                    a("buffer_load_dwordx4 v5, s[16:19], s27 offen lds", tag=("c", j))
                ops.append(f)
        return ops
    for f in chunk_vmem(0): f()
    stamp(a, 10)
    a("s_lshl_b32 s29, s23, 12")
    a("s_add_u32 s29, s29, %d" % ST)
    for j in range(1, PD):
        for f in chunk_vmem(j): f()
    a("v_mov_b32 v8, v2")
    a("v_add_u32 v9, 0x10000, v2")
    a("v_add_u32 v10, 0x20000, v2")
    a("v_mov_b32 v11, 0")
    def lds_addr(off):
        return "v%d" % (8 + off // 65536), off % 65536
    steps = []
    for j, ch in enumerate(chunks):
        base = RING + (j % NSLOT) * SLOT
        if ch[0] == "A":
            for kk in range(4):
                for b in range(NA):
                    steps.append((j, b, 4 * ch[1] + kk, base + b * 4096 + kk * 1024))
            if ch[1] == 7:
                for b in range(NA):
                    steps.append((j, b, 32, EXT + b * 1024))
        else:
            b, hh = ch[1], ch[2]
            for kk in range(16):
                steps.append((j, b, 16 * hh + kk, base + kk * 1024))
            if hh == 1:
                steps.append((j, b, 32, EXT + b * 1024))
    LA = NWB - 2
    def rd(i):
        j, b, n, off = steps[i]
        r, o = lds_addr(off)
        a("ds_read_b128 %s, %s offset:%d" % (vr(WB + (i % NWB) * 4, 4), r, o), tag=("r", i))
    side = []
    valu = []
    def stats_code():
        L = []
        for k in (8, 4, 2, 1):
            for i in range(k):
                L.append("v_add_f32 v%d, v%d, v%d" % (STR + i, STR + i, STR + i + k))
        L.append("v_mov_b32 v%d, v%d" % (STR + 1, STR))
        L.append("v_permlane32_swap_b32 v%d, v%d" % (STR, STR + 1))
        L.append("v_mul_f32 v%d, 0xbb000000, v%d" % (MU, STR))
        L.append("v_mul_f32 v%d, 0x3b000000, v%d" % (STR + 1, STR + 1))
        L.append("v_fma_f32 v%d, -v%d, v%d, v%d" % (STR + 1, MU, MU, STR + 1))
        L.append("v_max_f32 v%d, 0, v%d" % (STR + 1, STR + 1))
        L.append("v_add_f32 v%d, %s, v%d" % (STR + 1, f32hex(1e-5), STR + 1))
        L.append("v_rsq_f32 v%d, v%d" % (RS, STR + 1))
        L.append("v_sqrt_f32 v%d, v%d" % (KK, STR + 1))
        L.append("v_mul_f32 v%d, %s, v%d" % (C1, f32hex(-LOG2E), RS))
        L.append("v_mul_f32 v%d, %s, v%d" % (KK, f32hex(-LOG2E), KK))
        t = Asm()
        split3(t, MU, T0, T0 + 1, T0 + 2)
        pack2(t, BX, T0, T0 + 1)
        pack2(t, BX + 1, T0, T0 + 2)
        pack2(t, BX + 2, T0, T0 + 1)
        L += [x.text for x in t.items]
        L.append("v_mov_b32 v%d, 0" % (BX + 3))
        return L
    def epi_code(b):
        G, U = ACC + 16 * b, ACC + 16 * b + 8
        L = []
        for r in range(8):
            L.append("v_mul_f32 v%d, v%d, v%d" % (G + r, C1, G + r))
        for r in range(8):
            L.append("v_exp_f32 v%d, v%d" % (E + r, G + r))
            L.append("v_mul_f32 v%d, v%d, v%d" % (U + r, G + r, U + r))
        for r in range(8):
            L.append("v_fma_f32 v%d, v%d, v%d, v%d" % (E + r, E + r, KK, KK))
        for r in range(8):
            L.append("v_rcp_f32 v%d, v%d" % (E + r, E + r))
            if r > 0:
                L.append("v_mul_f32 v%d, v%d, v%d" % (U + r - 1, U + r - 1, E + r - 1))
        L.append("v_mul_f32 v%d, v%d, v%d" % (U + 7, U + 7, E + 7))
        PK = PKR + (b % 2) * 4
        for r in range(4):
            L.append("v_cvt_pk_bf16_f32 v%d, v%d, v%d" % (PK + r, U + 2 * r, U + 2 * r + 1))
        L.append("buffer_store_dwordx4 %s, v2, s[16:19], %s offen offset:%d" % (vr(PK, 4), "s30" if b < 4 else "s31", (b % 4) * 1024))
        return L
    def cost(s):
        return 8 if s.split()[0] in TRANS else 4
    a("s_mul_i32 s30, s23, %d" % (112 * 1024))
    a("s_mul_i32 s31, s22, %d" % (7 * 1024))
    a("s_add_u32 s30, s30, s31")
    a("s_add_u32 s30, s30, %d" % AF)
    a("s_add_u32 s32, s31, %d" % CS)
    a("s_add_u32 s31, s30, 4096")
    NPF = 14 if K5MAP == 8 else 7
    a("s_mul_i32 s36, s33, %d" % (NPF * 4096))
    a("s_mul_i32 s37, s20, %d" % (NPF * 1024))
    a("s_add_u32 s36, s36, s37")
    if K5MAP != 8:
        a("s_and_b32 s37, s2, 1")
        a("s_mul_i32 s37, s37, %d" % (8 * 112 * 1024))
        a("s_add_u32 s36, s36, s37")
    a("s_add_u32 s36, s36, %d" % WDF)
    stamp(a, 1)
    a.wait_vm(("c", 0))
    a("s_barrier")
    stamp(a, 2)
    if STAMP: a.wait_lg0()
    for i in range(LA):
        rd(i)
    first = set()
    done_blocks = []
    last_step_of_block = {}
    for i, st in enumerate(steps):
        last_step_of_block[st[1]] = i
    nsteps_chunk = {}
    for st in steps:
        nsteps_chunk[st[0]] = nsteps_chunk.get(st[0], 0) + 1
    pos_in_chunk = 0
    nextq = PD
    for i, (j, b, n, off) in enumerate(steps):
        if i == 0 or steps[i - 1][0] != j:
            pos_in_chunk = 0
            if j in (1, 2, 4, 6, 8, 10): stamp(a, 3 + (1, 2, 4, 6, 8, 10).index(j))
            while nextq < len(chunks) and (nextq <= j + PD or (j >= 8 - PD + 1 and nextq <= j + PD + (j - (8 - PD)) and nextq < j + NSLOT - 1)):
                side += chunk_vmem(nextq); nextq += 1
                if nextq == len(chunks) and PREF:
                    def pf(k):
                        def f():
                            a("s_add_u32 s27, s36, %d" % (k * 1024))
                            a("buffer_load_dwordx4 v[204:207], v2, s[16:19], s27 offen", tag="pf")
                        return f
                    side += [pf(k) for k in range(NPF)]
            if j == 0:
                def st_loads(q):
                    def f():
                        a("buffer_load_dwordx4 %s, v2, s[16:19], s29 offen offset:%d" % (vr(STR + 4 * q, 4), q * 1024), tag="st")
                    return f
                side += [st_loads(q) for q in range(4)]
            if j == 1:
                def ext1():
                    a("s_add_u32 s27, s32, s26")
                    a("s_add_u32 m0, s26, %d" % EXT)
                    a("buffer_load_dwordx4 v2, s[16:19], s27 offen lds", tag=("c", 1 + PD))
                def ext2():
                    a("s_add_u32 s28, s26, 4096")
                    a("s_min_u32 s28, s28, 6144")
                    a("s_add_u32 s27, s32, s28")
                    a("s_add_u32 m0, s28, %d" % EXT)
                    a("buffer_load_dwordx4 v2, s[16:19], s27 offen lds", tag=("c", 1 + PD))
                side = [ext1, ext2] + side
            if j == 0 and TOUCH:
                def tch():
                    a("buffer_load_dword v204, v11, s[16:19], s30 offen", tag="touch")
                side.append(tch)
            if j == 4:
                a.wait_vm("st")
                valu += stats_code()
        if i + LA < len(steps):
            jn = steps[i + LA][0]
            if steps[i + LA - 1][0] != jn:
                a.wait_vm(("c", jn))
                a("s_barrier")
        if i % 2 == 0:
            a.wait_lg([("r", i), ("r", i + 1)])
        acc = vr(ACC + 16 * b, 16)
        bop = vr(BX, 4) if n == 32 else ar(4 * n, 4)
        a("v_mfma_f32_32x32x16_bf16 %s, %s, %s, %s" % (acc, vr(WB + (i % NWB) * 4, 4), bop, acc if b in first else "0"))
        first.add(b)
        if i + LA < len(steps):
            rd(i + LA)
        budget = 16 if i % 2 == 1 else 20
        remaining = nsteps_chunk[j] - pos_in_chunk
        if side and (len(side) * 2 >= remaining or pos_in_chunk % 2 == 0):
            side.pop(0)()
            budget -= 8
            if len(side) > remaining - 1 and side and j < 8:
                side.pop(0)()
                budget -= 8
        while valu and budget >= cost(valu[0]):
            budget -= cost(valu[0])
            a(valu.pop(0))
        pos_in_chunk += 1
        for bb, li in last_step_of_block.items():
            if i == li + 3:
                valu += epi_code(bb)
                done_blocks.append(bb)
    assert not side
    stamp(a, 11)
    for bb in range(7):
        if bb not in done_blocks:
            valu += epi_code(bb)
    for x in valu:
        a(x)
    stamp(a, 12)
    stamp_store(a, 3, 13)
    a.label("L_k4_end")
    a("s_endpgm")
    return kernel_text("k4_gateup_kernel", a, 208, 102, accum=208, nagpr=128)
```
